```python
import torch

def _softmax(x, axis=-1):
    return torch.softmax(x, dim=axis)
def _gelu(x):
    return torch.nn.functional.gelu(x, approximate="tanh")
def _silu(x):
    return torch.nn.functional.silu(x)
def _sigmoid(x):
    return torch.sigmoid(x)
def _layernorm(x, axis=-1, eps=1e-5):
    m = x.mean(dim=axis, keepdim=True)
    v = x.var(dim=axis, keepdim=True, unbiased=False)
    return (x - m) / torch.sqrt(v + eps)
def _scatter_add(tgt, idx, src, axis=0):
    return tgt.clone().index_add_(axis, idx, src)
def _segment_sum(src, seg, n):
    out = torch.zeros((n,) + src.shape[1:], dtype=src.dtype)
    return out.index_add_(0, seg, src)
def _pad(x, pw):
    flat = tuple(v for pair in reversed(pw) for v in pair)
    return torch.nn.functional.pad(x, flat)

kernel_name = 'standalone__batchnorm__sampling'

def setup_inputs():

    _w = (lambda a: (lambda t: t.to(torch.bfloat16) if t.is_floating_point() else t)(torch.as_tensor(a)))
    B, S, C = 1024, 16, 576
    K = 3
    return {
        "x": _w((lambda *s: torch.randn(*s, dtype=torch.bfloat16) * 0.05)(B, S, C)),
        "w": _w((lambda *s: torch.randn(*s, dtype=torch.bfloat16) * 0.05)(K, C, C) * (1.0 / (K * C) ** 0.5)),
        "mean": _w((lambda *s: torch.randn(*s, dtype=torch.bfloat16) * 0.05)(C) * 0.1),
        "var": _w(torch.abs((lambda *s: torch.randn(*s, dtype=torch.bfloat16) * 0.05)(C)) + 0.5),
        "g": _w((lambda *s: torch.randn(*s, dtype=torch.bfloat16) * 0.05)(C) + 1.0),
        "b": _w((lambda *s: torch.randn(*s, dtype=torch.bfloat16) * 0.05)(C) * 0.1),
    }

def reference(x, w, mean, var, g, b):
    K = 3
    P = K // 2
    S = x.shape[1]
    xp = _pad(x, ((0, 0), (P, P), (0, 0)))
    y = sum(torch.einsum('bsc,cd->bsd', xp[:, k:k + S, :], w[k]) for k in range(K))
    inv_std = 1.0 / torch.sqrt(var + 1e-5)
    y = (y - mean) * (g * inv_std) + b
    return _silu(y)
```

```python
import sys

NAME = "standalone__batchnorm__sampling_kernel"

HEADER = """; Kernarg layout for this problem (72 bytes, ptrs only, base s[0:1]):
"""

X_BYTES = 1024 * 16 * 576 * 2
W_BYTES = 3 * 576 * 576 * 2
XBUF = 32768
WBASE = 65536
WBUF = 27648
WEND = WBASE + 3 * WBUF
PARAM = WEND
LDS_BYTES = PARAM + 2048
WSTEP = 32 * 1152
ACC0 = 112

S_X, S_W, S_MEAN, S_VAR, S_G, S_B, S_OUT, S_DBG = 4, 6, 8, 10, 12, 14, 16, 18
SRD_X, SRD_W, SRD_O = 20, 24, 28
S_WAVE, S_BG, S_CG = 32, 33, 34
S_WSOFF, S_XSOFF, S_WCUR, S_XM0, S_CNT = 35, 36, 37, 38, 39
S_T0, S_T1, S_T2, S_T3 = 40, 41, 42, 43
S_WDST = 44
S_WS = 46
S_TS = 48

V_WOFF = 1
V_XOFF = 8
V_WLANE, V_WRD, V_XRD0, V_XRD1 = 16, 17, 18, 19
V_T = 20
V_PAR = 24
V_E = 64
V_LANE = 0


def XF(h, p):
    b = (h * 9 + p) * 4
    return f"a[{b}:{b+3}]"


def WFb(jj, k):
    return 72 + (jj * 3 + k) * 4


def ACC(jj, s):
    return ACC0 + (jj * 8 + s) * 4 if jj < 4 else ACC0 + 128 + s * 4


class Gen:
    def __init__(self, opts):
        self.L = []
        self.o = opts

    def A(self, s):
        self.L.append("    " + s)

    def label(self, s):
        self.L.append(s + ":")

    def C(self, s):
        self.L.append("    ; " + s)

    def mfma_groups(self, wv, h):
        ph, ch = wv >> 1, wv & 1
        groups = []
        for jj in range(5):
            g = []
            sl = range(8) if jj < 4 else range(4 * ch, 4 * ch + 4)
            for s in sl:
                up = (s % 2 == 0) if ph == 0 else (s % 2 == 1)
                ks = [0, 1, 2] if up else [2, 1, 0]
                for k in ks:
                    p = s + k - 1 if ph == 0 else s + k
                    if p < 0 or p > 8:
                        continue
                    c = ACC(jj, s if jj < 4 else s - 4 * ch)
                    wb = WFb(jj, k)
                    g.append(f"v_mfma_f32_16x16x32_bf16 v[{c}:{c+3}], a[{wb}:{wb+3}], {XF(h, p)}, v[{c}:{c+3}]")
            groups.append(g)
        return groups

    def w_reads(self, wv, jj):
        ch = wv & 1
        j = 5 * ch + jj if jj < 4 else 4
        out = []
        for k in range(3):
            for e in range(2):
                b = WFb(jj, k) + 2 * e
                out.append(f"ds_read_b64_tr_b16 a[{b}:{b+1}], v{V_WRD} offset:{k*9216 + e*2304 + j*32}")
        return out

    def x_reads(self, wv, h):
        ph = wv >> 1
        out = []
        for p in range(9):
            s = p + 7 * ph
            out.append(f"ds_read_b128 {XF(h, p)}, v{V_XRD0 + h} offset:{s*1024}")
        return out

    def w_dma(self, wv, dst_sgpr, soff):
        n = 7 if wv < 3 else 6
        out = []
        for i in range(n):
            ins = []
            if i % 4 == 0:
                ins.append(f"s_add_u32 m0, s{dst_sgpr}, {wv*7168 + i*1024}")
                ins.append("s_nop 0")
            ins.append(f"buffer_load_dwordx4 v{V_WOFF+i}, s[{SRD_W}:{SRD_W+3}], s{soff} offen offset:{(i%4)*1024} lds")
            out.append(ins)
        return out

    def x_dma(self, wv, p, dst_sgpr, soff):
        out = []
        for i in range(4):
            ins = []
            if i == 0:
                ins.append(f"s_add_u32 m0, s{dst_sgpr}, {p*16384 + wv*4096}")
                ins.append("s_nop 0")
            ins.append(f"buffer_load_dwordx4 v{V_XOFF+4*p+i}, s[{SRD_X}:{SRD_X+3}], s{soff} offen offset:{i*1024} lds")
            out.append(ins)
        return out

    def stamp(self, idx):
        if self.o.get("stamps"):
            self.A(f"s_memtime s[{S_TS+2*idx}:{S_TS+2*idx+1}]")

    def prologue(self):
        A = self.A
        A("s_cmp_ge_u32 s2, 256")
        A("s_cbranch_scc1 L_end")
        A(f"s_load_dwordx16 s[4:19], s[0:1], 0")
        if self.o.get("stamps"):
            A(f"s_load_dwordx2 s[{S_WS}:{S_WS+1}], s[0:1], 64")
            A(f"s_memrealtime s[{S_TS+30}:{S_TS+31}]")
        self.stamp(0)
        A(f"v_lshrrev_b32 v{V_T}, 6, v0")
        A(f"v_mov_b32 v{V_T+1}, v0")
        A(f"v_readfirstlane_b32 s{S_WAVE}, v{V_T}")
        A(f"v_and_b32 v0, 63, v0")
        self.C("workgroup decode: xcd = id&7, j = id>>3, cg = j&3, bg = xcd*8 + (j>>2)")
        A(f"s_and_b32 s{S_T0}, s2, 7")
        A(f"s_lshr_b32 s{S_T1}, s2, 3")
        A(f"s_and_b32 s{S_CG}, s{S_T1}, 3")
        A(f"s_lshr_b32 s{S_T1}, s{S_T1}, 2")
        A(f"s_lshl_b32 s{S_T0}, s{S_T0}, 3")
        A(f"s_add_u32 s{S_BG}, s{S_T0}, s{S_T1}")
        self.C("param channel index = min(cg*144 + tid, 575) * 2 -> v21")
        A(f"s_mul_i32 s{S_T3}, s{S_CG}, 144")
        A(f"v_add_u32 v{V_T+2}, s{S_T3}, v{V_T+1}")
        A(f"v_min_u32 v{V_T+2}, 575, v{V_T+2}")
        A(f"v_lshlrev_b32 v{V_T+2}, 1, v{V_T+2}")
        self.C("x DMA voffsets: (8p + (l>>3))*18432 + ((l&7) ^ (4p + (l>>4)))*16 + (4v+i)*1152 - i*1024")
        A(f"v_lshrrev_b32 v{V_E}, 3, v0")
        A(f"v_mul_u32_u24 v{V_E}, 18432, v{V_E}")
        A(f"v_and_b32 v{V_E+1}, 7, v0")
        A(f"v_lshrrev_b32 v{V_E+2}, 4, v0")
        A(f"v_xor_b32 v{V_E+1}, v{V_E+1}, v{V_E+2}")
        A(f"v_lshl_add_u32 v{V_E}, v{V_E+1}, 4, v{V_E}")
        A(f"s_mul_i32 s{S_T0}, s{S_WAVE}, {4*1152}")
        A(f"v_add_u32 v{V_XOFF}, s{S_T0}, v{V_E}")
        A(f"v_xor_b32 v{V_E}, 64, v{V_XOFF}")
        A(f"v_add_u32 v{V_XOFF+4}, {8*18432}, v{V_E}")
        for i in range(1, 4):
            A(f"v_add_u32 v{V_XOFF+i}, {128*i}, v{V_XOFF}")
            A(f"v_add_u32 v{V_XOFF+4+i}, {128*i}, v{V_XOFF+4}")
        self.C("w DMA voffsets")
        A(f"s_mul_i32 s{S_T0}, s{S_WAVE}, 448")
        A(f"s_movk_i32 s{S_T1}, -18")
        A(f"s_movk_i32 s{S_T2}, 576")
        A(f"s_movk_i32 s{S_T3}, 1152")
        A(f"v_add_u32 v{V_E}, s{S_T0}, v0")
        for i in range(7):
            q = V_E
            t = V_E + 4
            if i:
                A(f"v_add_u32 v{q}, 64, v{q}")
            A(f"v_mul_u32_u24 v{t}, 3641, v{q}")
            A(f"v_lshrrev_b32 v{t}, 16, v{t}")
            A(f"v_mad_i32_i24 v{t+1}, v{t}, s{S_T1}, v{q}")
            A(f"v_lshrrev_b32 v{t+2}, 5, v{t}")
            A(f"v_and_b32 v{t+3}, 0x13, v{t}")
            A(f"v_and_b32 v{t+4}, 4, v{t}")
            A(f"v_lshl_or_b32 v{t+3}, v{t+4}, 1, v{t+3}")
            A(f"v_bfe_u32 v{t+4}, v{t}, 3, 1")
            A(f"v_lshl_or_b32 v{t+3}, v{t+4}, 2, v{t+3}")
            A(f"v_mad_u32_u24 v{t+3}, v{t+2}, s{S_T2}, v{t+3}")
            A(f"v_mul_u32_u24 v{t+3}, s{S_T3}, v{t+3}")
            A(f"v_lshl_add_u32 v{V_WOFF+i}, v{t+1}, 4, v{t+3}")
            if i % 4:
                A(f"v_subrev_u32 v{V_WOFF+i}, {(i%4)*1024}, v{V_WOFF+i}")
        self.C("LDS read addresses")
        A(f"v_lshrrev_b32 v{V_E}, 5, v0")
        A(f"v_lshlrev_b32 v{V_E}, 4, v{V_E}")
        A(f"v_bfe_u32 v{V_E+1}, v0, 2, 3")
        A(f"v_add_u32 v{V_E}, v{V_E}, v{V_E+1}")
        A(f"v_mul_u32_u24 v{V_E}, 288, v{V_E}")
        A(f"v_and_b32 v{V_E+1}, 3, v0")
        A(f"v_lshl_add_u32 v{V_WLANE}, v{V_E+1}, 3, v{V_E}")
        A(f"v_add_u32 v{V_WRD}, {WBASE}, v{V_WLANE}")
        A(f"v_bfe_u32 v{V_E}, v0, 3, 1")
        A(f"v_lshlrev_b32 v{V_E}, 14, v{V_E}")
        A(f"v_and_b32 v{V_E+1}, 7, v0")
        A(f"v_lshl_add_u32 v{V_E}, v{V_E+1}, 7, v{V_E}")
        A(f"v_bfe_u32 v{V_E+1}, v0, 1, 3")
        A(f"v_lshrrev_b32 v{V_E+2}, 4, v0")
        A(f"v_xor_b32 v{V_E+1}, v{V_E+1}, v{V_E+2}")
        A(f"v_lshl_add_u32 v{V_XRD0}, v{V_E+1}, 4, v{V_E}")
        A(f"v_xor_b32 v{V_XRD1}, 64, v{V_XRD0}")
        self.C("SRDs")
        A("s_waitcnt lgkmcnt(0)")
        self.stamp(1)
        A(f"s_mul_i32 s{S_T0}, s{S_BG}, {16*18432}")
        A(f"s_add_u32 s{SRD_X}, s{S_X}, s{S_T0}")
        A(f"s_addc_u32 s{SRD_X+1}, s{S_X+1}, 0")
        A(f"s_mov_b32 s{SRD_X+2}, {16*18432}")
        A(f"s_mov_b32 s{SRD_X+3}, 0x20000")
        A(f"s_mul_i32 s{S_T1}, s{S_CG}, 288")
        A(f"s_add_u32 s{SRD_W}, s{S_W}, s{S_T1}")
        A(f"s_addc_u32 s{SRD_W+1}, s{S_W+1}, 0")
        A(f"s_sub_u32 s{SRD_W+2}, {W_BYTES}, s{S_T1}")
        A(f"s_mov_b32 s{SRD_W+3}, 0x20000")
        A(f"s_mov_b32 s{S_T3}, s{SRD_W+2}")
        A(f"s_add_u32 s{SRD_O}, s{S_OUT}, s{S_T0}")
        A(f"s_addc_u32 s{SRD_O+1}, s{S_OUT+1}, 0")
        A(f"s_mov_b32 s{SRD_O+2}, {16*18432}")
        A(f"s_mov_b32 s{SRD_O+3}, 0x20000")
        self.C("BN parameter loads (one channel per thread)")
        A(f"global_load_ushort v{V_PAR}, v{V_T+2}, s[{S_MEAN}:{S_MEAN+1}]")
        A(f"global_load_ushort v{V_PAR+1}, v{V_T+2}, s[{S_VAR}:{S_VAR+1}]")
        A(f"global_load_ushort v{V_PAR+2}, v{V_T+2}, s[{S_G}:{S_G+1}]")
        A(f"global_load_ushort v{V_PAR+3}, v{V_T+2}, s[{S_B}:{S_B+1}]")
        self.C("dispatch on wave id")
        A(f"s_cmp_eq_u32 s{S_WAVE}, 1")
        A("s_cbranch_scc1 L_w1")
        A(f"s_cmp_eq_u32 s{S_WAVE}, 2")
        A("s_cbranch_scc1 L_w2")
        A(f"s_cmp_eq_u32 s{S_WAVE}, 3")
        A("s_cbranch_scc1 L_w3")

    def params_compute(self):
        A = self.A
        P = V_PAR
        T = V_E
        for i in range(4):
            A(f"v_lshlrev_b32 v{P+i}, 16, v{P+i}")
        A(f"v_add_f32 v{T}, 0x3727c5ac, v{P+1}")
        A(f"v_cvt_pk_bf16_f32 v{T}, v{T}, v{T}")
        A(f"v_lshlrev_b32 v{T}, 16, v{T}")
        A(f"v_sqrt_f32 v{T}, v{T}")
        A("s_nop 0")
        A(f"v_cvt_pk_bf16_f32 v{T}, v{T}, v{T}")
        A(f"v_lshlrev_b32 v{T}, 16, v{T}")
        A(f"v_rcp_f32 v{T}, v{T}")
        A("s_nop 0")
        A(f"v_cvt_pk_bf16_f32 v{T}, v{T}, v{T}")
        A(f"v_lshlrev_b32 v{T}, 16, v{T}")
        A(f"v_mul_f32 v{T}, v{P+2}, v{T}")
        A(f"v_cvt_pk_bf16_f32 v{T}, v{T}, v{T}")
        A(f"v_lshlrev_b32 v{T}, 16, v{T}")
        A(f"v_fma_f32 v{T+1}, -v{P}, v{T}, v{P+3}")
        A(f"v_mul_f32 v{T}, 0x3fb8aa3b, v{T}")
        A(f"v_mul_f32 v{T+1}, 0x3fb8aa3b, v{T+1}")
        A(f"v_lshlrev_b32 v{T+2}, 2, v{V_T+1}")
        A(f"v_add_u32 v{T+2}, {PARAM}, v{T+2}")
        A(f"ds_write_b32 v{T+2}, v{T}")
        A(f"ds_write_b32 v{T+2}, v{T+1} offset:1024")

    def wave_main(self, wv):
        A = self.A
        nw = 7 if wv < 3 else 6
        win = nw + 4
        self.label(f"L_w{wv}")
        self.C("prologue DMA: x0, w0, w1, x1a | x1b, w2")
        A(f"s_mov_b32 s{S_XSOFF}, 0")
        A(f"s_mov_b32 s{S_WSOFF}, 0")
        A(f"s_mov_b32 s{S_XM0}, 0")
        A(f"s_mov_b32 s{S_WDST}, {WBASE}")
        for g in self.x_dma(wv, 0, S_XM0, S_XSOFF) + self.x_dma(wv, 1, S_XM0, S_XSOFF) + self.w_dma(wv, S_WDST, S_WSOFF):
            for i in g: A(i)
        A(f"s_mov_b32 s{S_WSOFF}, {WSTEP}")
        A(f"s_mov_b32 s{S_WDST}, {WBASE+WBUF}")
        for g in self.w_dma(wv, S_WDST, S_WSOFF):
            for i in g: A(i)
        A(f"s_mov_b32 s{S_XSOFF}, 128")
        A(f"s_mov_b32 s{S_XM0}, {XBUF}")
        for g in self.x_dma(wv, 0, S_XM0, S_XSOFF) + self.x_dma(wv, 1, S_XM0, S_XSOFF):
            for i in g: A(i)
        A(f"s_mov_b32 s{S_WSOFF}, {2*WSTEP}")
        A(f"s_mov_b32 s{S_WDST}, {WBASE+2*WBUF}")
        for g in self.w_dma(wv, S_WDST, S_WSOFF)[:1]:
            for i in g: A(i)
        self.stamp(2)
        total = 17 + 2 * nw
        A(f"s_waitcnt vmcnt({total})")
        self.params_compute()
        self.C("zero accumulators")
        for r in range(ACC0, 256):
            A(f"v_mov_b32 v{r}, 0")
        A(f"s_mov_b32 s{S_WCUR}, {WBASE}")
        A(f"s_mov_b32 s{S_XM0}, 0")
        A(f"s_mov_b32 s{S_CNT}, 9")
        A(f"s_waitcnt vmcnt({total - 8 - nw})")
        A("s_barrier")
        self.stamp(3)
        for i in self.w_reads(wv, 0) + self.x_reads(wv, 0):
            A(i)
        self.loop(wv)
        self.stamp(4)
        A("s_branch L_epi")

    def step(self, wv, odd, late_dma, early_dma_fn):
        A = self.A
        h = odd
        nw = 7 if wv < 3 else 6
        win = nw + 4
        groups = self.mfma_groups(wv, h)
        n = [len(g) for g in groups]
        start = [sum(n[:i]) for i in range(5)]
        total = sum(n)
        fill = [[] for _ in range(total)]
        pre = [[] for _ in range(total)]

        def spread(items, lo, hi):
            m = len(items)
            for idx, it in enumerate(items):
                pos = lo + (idx * (hi - lo)) // m
                fill[pos].extend(it if isinstance(it, list) else [it])

        xr1 = self.x_reads(wv, 1) if not odd else []
        r0 = self.w_reads(wv, 1) + xr1[0:3]
        r1 = self.w_reads(wv, 2) + xr1[3:6]
        r2 = self.w_reads(wv, 3) + self.w_reads(wv, 4) + xr1[6:9]
        spread(r0, start[0] + 0, start[0] + 16)
        spread(r1, start[1] + 0, start[1] + 16)
        spread(r2, start[2] + 0, start[2] + 16)
        for gi in range(4):
            pre[start[gi]].append("s_waitcnt lgkmcnt(0)" if gi != 3 else f"s_waitcnt vmcnt({win}) lgkmcnt(0)")
        pre[start[3]].append("s_barrier")
        setup, early = early_dma_fn()
        assert len(setup) <= 7
        for idx, g in enumerate(setup):
            fill[start[2] + 16 + idx].extend(g)
        r3 = self.w_reads(wv, 0) + (self.x_reads(wv, 0) if odd else [])
        spread(r3, start[3] + 0, start[3] + 22)
        off = wv
        ne = len(early)
        for idx, g in enumerate(early):
            pos = start[3] + 3 + off + idx * 6
            fill[pos].extend(g)
        for idx, g in enumerate(late_dma):
            pos = start[0] + 3 + off + idx * 7
            fill[pos].extend(g)
        flat = [m for g in groups for m in g]
        for i, m in enumerate(flat):
            for x in pre[i]: A(x)
            A(m)
            for x in fill[i]: A(x)

    def loop(self, wv):
        A = self.A
        nw = 7 if wv < 3 else 6
        NE = 5

        def window(p):
            return self.x_dma(wv, p, S_XM0, S_XSOFF) + self.w_dma(wv, S_WDST, S_WSOFF)

        def early_even():
            st = [[f"s_mov_b32 s{S_WDST}, s{S_WCUR}", f"s_add_u32 s{S_WCUR}, s{S_WCUR}, {WBUF}"],
                  [f"s_cmp_eq_u32 s{S_WCUR}, {WEND}", f"s_cselect_b32 s{S_WCUR}, {WBASE}, s{S_WCUR}"],
                  [f"v_add_u32 v{V_WRD}, s{S_WCUR}, v{V_WLANE}", f"s_add_u32 s{S_WSOFF}, s{S_WSOFF}, {WSTEP}"],
                  [f"s_cmp_lt_u32 s{S_WSOFF}, {18*WSTEP}", f"s_cselect_b32 s{SRD_W+2}, s{S_T3}, 0"],
                  [f"s_add_u32 s{S_XSOFF}, s{S_XSOFF}, 128", f"v_xor_b32 v{V_XRD0}, {XBUF}, v{V_XRD0}"],
                  [f"s_cmp_lt_u32 s{S_XSOFF}, {9*128}", f"s_cselect_b32 s{SRD_X+2}, {16*18432}, 0"],
                  [f"v_xor_b32 v{V_XRD1}, {XBUF}, v{V_XRD1}"]]
            return st, window(0)[:NE]

        def early_odd():
            st = [[f"s_mov_b32 s{S_WDST}, s{S_WCUR}", f"s_add_u32 s{S_WCUR}, s{S_WCUR}, {WBUF}"],
                  [f"s_cmp_eq_u32 s{S_WCUR}, {WEND}", f"s_cselect_b32 s{S_WCUR}, {WBASE}, s{S_WCUR}"],
                  [f"v_add_u32 v{V_WRD}, s{S_WCUR}, v{V_WLANE}", f"s_add_u32 s{S_WSOFF}, s{S_WSOFF}, {WSTEP}"],
                  [f"s_cmp_lt_u32 s{S_WSOFF}, {18*WSTEP}", f"s_cselect_b32 s{SRD_W+2}, s{S_T3}, 0"]]
            return st, window(1)[:NE]

        late_even = window(1)[NE:]
        late_odd = window(0)[NE:]
        self.late_even = late_even
        self.label(f"L_loop{wv}")
        self.step(wv, 0, late_even, early_even)
        self.step(wv, 1, late_odd, early_odd)
        A(f"s_xor_b32 s{S_XM0}, s{S_XM0}, {XBUF}")
        A(f"s_sub_u32 s{S_CNT}, s{S_CNT}, 1")
        A(f"s_cmp_lg_u32 s{S_CNT}, 0")
        A(f"s_cbranch_scc1 L_loop{wv}")

    def epilogue(self):
        A = self.A
        self.label("L_epi")
        T = V_E
        A(f"s_lshr_b32 s{S_T0}, s{S_WAVE}, 1")
        A(f"s_and_b32 s{S_T1}, s{S_WAVE}, 1")
        A(f"v_lshrrev_b32 v{V_T}, 4, v0")
        A(f"v_lshlrev_b32 v{V_T+1}, 4, v{V_T}")
        A(f"v_add_u32 v{V_T+1}, {PARAM}, v{V_T+1}")
        A(f"s_mul_i32 s{S_T2}, s{S_T1}, 320")
        A(f"v_add_u32 v{V_T+2}, s{S_T2}, v{V_T+1}")
        for jj in range(4):
            A(f"ds_read_b128 v[{V_PAR+8*jj}:{V_PAR+8*jj+3}], v{V_T+2} offset:{64*jj}")
            A(f"ds_read_b128 v[{V_PAR+8*jj+4}:{V_PAR+8*jj+7}], v{V_T+2} offset:{64*jj+1024}")
        A(f"ds_read_b128 v[{V_PAR+32}:{V_PAR+35}], v{V_T+1} offset:256")
        A(f"ds_read_b128 v[{V_PAR+36}:{V_PAR+39}], v{V_T+1} offset:{256+1024}")
        A(f"v_and_b32 v1, 15, v0")
        A(f"v_mul_u32_u24 v1, 18432, v1")
        A(f"s_mul_i32 s{S_T2}, s{S_T0}, {8*1152}")
        A(f"s_mul_i32 s{S_T3}, s{S_CG}, 288")
        A(f"s_add_u32 s{S_T2}, s{S_T2}, s{S_T3}")
        A(f"v_add_u32 v1, s{S_T2}, v1")
        A(f"v_bfe_u32 v3, v0, 4, 1")
        A(f"v_lshrrev_b32 v4, 5, v0")
        A(f"v_mul_u32_u24 v2, 1152, v3")
        A(f"v_lshl_add_u32 v2, v4, 4, v2")
        A(f"v_add_u32 v2, v2, v1")
        A(f"s_mul_i32 s{S_T2}, s{S_T1}, {4*1152}")
        A(f"s_add_u32 s{S_T2}, s{S_T2}, 128")
        A(f"v_add_u32 v2, s{S_T2}, v2")
        A(f"v_lshl_add_u32 v1, v3, 5, v1")
        A(f"v_lshl_add_u32 v1, v4, 4, v1")
        A(f"s_mul_i32 s{S_T2}, s{S_T1}, 160")
        A(f"v_add_u32 v1, s{S_T2}, v1")
        A(f"v_add_u32 v5, {4*1152}, v1")
        A(f"s_mov_b32 s{S_T0}, 0x3fb8aa3b")
        A(f"s_mov_b32 s{S_T1}, 0x3fb8aa3b")
        A("s_waitcnt lgkmcnt(0)")
        self.stamp(5)

        def tile(acc, par, dst, tmp):
            y, e = tmp, tmp + 4
            ins = []
            ins.append(f"v_pk_fma_f32 v[{y}:{y+1}], v[{acc}:{acc+1}], v[{par}:{par+1}], v[{par+4}:{par+5}]")
            ins.append(f"v_pk_fma_f32 v[{y+2}:{y+3}], v[{acc+2}:{acc+3}], v[{par+2}:{par+3}], v[{par+6}:{par+7}]")
            for i in range(4):
                ins.append(f"v_exp_f32 v{e+i}, -v{y+i}")
            ins.append(f"v_pk_fma_f32 v[{e}:{e+1}], v[{e}:{e+1}], s[{S_T0}:{S_T1}], s[{S_T0}:{S_T1}]")
            ins.append(f"v_pk_fma_f32 v[{e+2}:{e+3}], v[{e+2}:{e+3}], s[{S_T0}:{S_T1}], s[{S_T0}:{S_T1}]")
            for i in range(4):
                ins.append(f"v_rcp_f32 v{e+i}, v{e+i}")
            ins.append(f"v_pk_mul_f32 v[{y}:{y+1}], v[{y}:{y+1}], v[{e}:{e+1}]")
            ins.append(f"v_pk_mul_f32 v[{y+2}:{y+3}], v[{y+2}:{y+3}], v[{e+2}:{e+3}]")
            ins.append(f"v_cvt_pk_bf16_f32 v{dst}, v{y}, v{y+1}")
            ins.append(f"v_cvt_pk_bf16_f32 v{dst+1}, v{y+2}, v{y+3}")
            return ins

        def pair(accA, parA, accB, parB, vaddr, off, slot):
            d = V_E + 32 + 4 * (slot % 4)
            a = tile(accA, parA, d, V_E + 16 * (slot % 2))
            b = tile(accB, parB, d + 2, V_E + 16 * (slot % 2) + 8)
            for x, y in zip(a, b):
                A(x); A(y)
            A("s_nop 1")
            A(f"v_permlane16_swap_b32 v{d}, v{d+2}")
            A(f"v_permlane16_swap_b32 v{d+1}, v{d+3}")
            A(f"buffer_store_dwordx4 v[{d}:{d+3}], v{vaddr}, s[{SRD_O}:{SRD_O+3}], 0 offen offset:{off}")

        slot = 0
        for s in range(8):
            for pr in range(2):
                va = 1 if s < 4 else 5
                pair(ACC(2 * pr, s), V_PAR + 16 * pr, ACC(2 * pr + 1, s), V_PAR + 16 * pr + 8, va, (s % 4) * 1152 + pr * 64, slot)
                slot += 1
        for s2 in range(2):
            pair(ACC(4, 2 * s2), V_PAR + 32, ACC(4, 2 * s2 + 1), V_PAR + 32, 2, 2 * s2 * 1152, slot)
            slot += 1
        self.stamp(6)
        if self.o.get("stamps"):
            A("s_waitcnt vmcnt(0)")
            self.stamp(7)
            A(f"s_memrealtime s[{S_TS+28}:{S_TS+29}]")
            A("s_waitcnt lgkmcnt(0)")
            A(f"s_lshl_b32 s{S_T0}, s2, 2")
            A(f"s_add_u32 s{S_T0}, s{S_T0}, s{S_WAVE}")
            A(f"s_lshl_b32 s{S_T0}, s{S_T0}, 6")
            A(f"v_mov_b32 v1, s{S_T0}")
            for i in range(8):
                A(f"v_mov_b32 v2, s{S_TS+2*i}")
                A(f"global_store_dword v1, v2, s[{S_WS}:{S_WS+1}] offset:{4*i}")
            A(f"v_mov_b32 v2, s{S_TS+30}")
            A(f"global_store_dword v1, v2, s[{S_WS}:{S_WS+1}] offset:32")
            A(f"v_mov_b32 v2, s{S_TS+28}")
            A(f"global_store_dword v1, v2, s[{S_WS}:{S_WS+1}] offset:36")
        self.label("L_end")
        A("s_endpgm")

    def emit(self):
        out = [HEADER.rstrip("\n")]
        out.append(f"; @launch grid=(256,1,1) block=(256,1,1) lds={LDS_BYTES}")
        out.append('.amdgcn_target "amdgcn-amd-amdhsa--gfx950"')
        out.append(".text")
        out.append(f".globl {NAME}")
        out.append(".p2align 8")
        out.append(f".type {NAME},@function")
        out.append(f"{NAME}:")
        self.prologue()
        for wv in range(4):
            self.wave_main(wv)
        self.epilogue()
        out += self.L
        out.append('.section .rodata,"a"')
        out.append(".p2align 6")
        out.append(f".amdhsa_kernel {NAME}")
        out.append("  .amdhsa_next_free_vgpr 392")
        out.append("  .amdhsa_next_free_sgpr 96")
        out.append("  .amdhsa_accum_offset 256")
        out.append("  .amdhsa_group_segment_fixed_size 0")
        out.append("  .amdhsa_kernarg_size 72")
        out.append("  .amdhsa_user_sgpr_count 2")
        out.append("  .amdhsa_user_sgpr_kernarg_segment_ptr 1")
        out.append("  .amdhsa_system_sgpr_workgroup_id_x 1")
        out.append("  .amdhsa_float_denorm_mode_32 3")
        out.append(".end_amdhsa_kernel")
        return "\n".join(out) + "\n"


if __name__ == "__main__":
    opts = {}
    path = sys.argv[1]
    for a in sys.argv[2:]:
        k, _, v = a.partition("=")
        opts[k] = int(v) if v else 1
    open(path, "w").write(Gen(opts).emit())
```

```python
import sys

NAME = "standalone__batchnorm__sampling_kernel"

HEADER = """; Kernarg layout for this problem (72 bytes, ptrs only, base s[0:1]):
"""

X_BYTES = 1024 * 16 * 576 * 2
W_BYTES = 3 * 576 * 576 * 2
XBUF = 32768
WBASE = 65536
WBUF = 27648
WEND = WBASE + 3 * WBUF
PARAM = WEND
LDS_BYTES = PARAM + 2048
WSTEP = 32 * 1152
ACC0 = 112

S_X, S_W, S_MEAN, S_VAR, S_G, S_B, S_OUT, S_DBG = 4, 6, 8, 10, 12, 14, 16, 18
SRD_X, SRD_W, SRD_O = 20, 24, 28
S_WAVE, S_BG, S_CG = 32, 33, 34
S_WSOFF, S_XSOFF, S_WCUR, S_XM0, S_CNT = 35, 36, 37, 38, 39
S_T0, S_T1, S_T2, S_T3 = 40, 41, 42, 43
S_WDST = 44
S_WS = 46
S_TS = 48

V_WOFF = 1
V_XOFF = 8
V_WLANE, V_WRD, V_XRD0, V_XRD1 = 16, 17, 18, 19
V_T = 20
V_PAR = 24
V_E = 64
V_LANE = 0


def XF(h, p):
    b = (h * 9 + p) * 4
    return f"a[{b}:{b+3}]"


def WFb(jj, k):
    return 72 + (jj * 3 + k) * 4


def ACC(jj, s):
    return ACC0 + (jj * 8 + s) * 4 if jj < 4 else ACC0 + 128 + s * 4


class Gen:
    def __init__(self, opts):
        self.L = []
        self.o = opts
        self.stflag = {0: "", 1: " nt", 2: " sc1", 3: " sc0 sc1", 4: " sc0", 5: " nt sc1", 6: " nt sc0 sc1"}[opts.get("st", 0)]

    def A(self, s):
        self.L.append("    " + s)

    def label(self, s):
        self.L.append(s + ":")

    def C(self, s):
        self.L.append("    ; " + s)

    def mfma_groups(self, wv, h):
        ph, ch = wv >> 1, wv & 1
        groups = []
        for jj in range(5):
            g = []
            sl = range(8) if jj < 4 else range(4 * ch, 4 * ch + 4)
            for s in sl:
                up = (s % 2 == 0) if ph == 0 else (s % 2 == 1)
                ks = [0, 1, 2] if up else [2, 1, 0]
                for k in ks:
                    p = s + k - 1 if ph == 0 else s + k
                    if p < 0 or p > 8:
                        continue
                    c = ACC(jj, s if jj < 4 else s - 4 * ch)
                    wb = WFb(jj, k)
                    g.append(f"v_mfma_f32_16x16x32_bf16 v[{c}:{c+3}], a[{wb}:{wb+3}], {XF(h, p)}, v[{c}:{c+3}]")
            groups.append(g)
        return groups

    def w_reads(self, wv, jj):
        ch = wv & 1
        j = 5 * ch + jj if jj < 4 else 4
        out = []
        for k in range(3):
            for e in range(2):
                b = WFb(jj, k) + 2 * e
                out.append(f"ds_read_b64_tr_b16 a[{b}:{b+1}], v{V_WRD} offset:{k*9216 + e*2304 + j*32}")
        return out

    def x_reads(self, wv, h):
        ph = wv >> 1
        out = []
        for p in range(9):
            s = p + 7 * ph
            out.append(f"ds_read_b128 {XF(h, p)}, v{V_XRD0 + h} offset:{s*1024}")
        return out

    def w_dma(self, wv, dst_sgpr, soff):
        n = 7 if wv < 3 else 6
        out = []
        for i in range(n):
            ins = []
            if i % 4 == 0:
                ins.append(f"s_add_u32 m0, s{dst_sgpr}, {wv*7168 + i*1024}")
                ins.append("s_nop 0")
            ins.append(f"buffer_load_dwordx4 v{V_WOFF+i}, s[{SRD_W}:{SRD_W+3}], s{soff} offen offset:{(i%4)*1024} lds")
            out.append(ins)
        return out

    def x_dma(self, wv, p, dst_sgpr, soff):
        out = []
        for i in range(4):
            ins = []
            if i == 0:
                ins.append(f"s_add_u32 m0, s{dst_sgpr}, {p*16384 + wv*4096}")
                ins.append("s_nop 0")
            ins.append(f"buffer_load_dwordx4 v{V_XOFF+4*p+i}, s[{SRD_X}:{SRD_X+3}], s{soff} offen offset:{i*1024} lds")
            out.append(ins)
        return out

    def stamp(self, idx):
        if self.o.get("stamps"):
            self.A(f"s_memtime s[{S_TS+2*idx}:{S_TS+2*idx+1}]")

    def prologue(self):
        A = self.A
        A("s_cmp_ge_u32 s2, 256")
        A("s_cbranch_scc1 L_end")
        A(f"s_load_dwordx16 s[4:19], s[0:1], 0")
        if self.o.get("stamps"):
            A(f"s_load_dwordx2 s[{S_WS}:{S_WS+1}], s[0:1], 64")
            A(f"s_memrealtime s[{S_TS+30}:{S_TS+31}]")
        self.stamp(0)
        A(f"v_lshrrev_b32 v{V_T}, 6, v0")
        A(f"v_mov_b32 v{V_T+1}, v0")
        A(f"v_readfirstlane_b32 s{S_WAVE}, v{V_T}")
        A(f"v_and_b32 v0, 63, v0")
        self.C("workgroup decode: xcd = id&7, j = id>>3, cg = j&3, bg = xcd*8 + (j>>2)")
        A(f"s_and_b32 s{S_T0}, s2, 7")
        A(f"s_lshr_b32 s{S_T1}, s2, 3")
        A(f"s_and_b32 s{S_CG}, s{S_T1}, 3")
        A(f"s_lshr_b32 s{S_T1}, s{S_T1}, 2")
        A(f"s_lshl_b32 s{S_T0}, s{S_T0}, 3")
        A(f"s_add_u32 s{S_BG}, s{S_T0}, s{S_T1}")
        self.C("param channel index = min(cg*144 + tid, 575) * 2 -> v21")
        A(f"s_mul_i32 s{S_T3}, s{S_CG}, 144")
        A(f"v_add_u32 v{V_T+2}, s{S_T3}, v{V_T+1}")
        A(f"v_min_u32 v{V_T+2}, 575, v{V_T+2}")
        A(f"v_lshlrev_b32 v{V_T+2}, 1, v{V_T+2}")
        self.C("x DMA voffsets: (8p + (l>>3))*18432 + ((l&7) ^ (4p + (l>>4)))*16 + (4v+i)*1152 - i*1024")
        A(f"v_lshrrev_b32 v{V_E}, 3, v0")
        A(f"v_mul_u32_u24 v{V_E}, 18432, v{V_E}")
        A(f"v_and_b32 v{V_E+1}, 7, v0")
        A(f"v_lshrrev_b32 v{V_E+2}, 4, v0")
        A(f"v_xor_b32 v{V_E+1}, v{V_E+1}, v{V_E+2}")
        A(f"v_lshl_add_u32 v{V_E}, v{V_E+1}, 4, v{V_E}")
        A(f"s_mul_i32 s{S_T0}, s{S_WAVE}, {4*1152}")
        A(f"v_add_u32 v{V_XOFF}, s{S_T0}, v{V_E}")
        A(f"v_xor_b32 v{V_E}, 64, v{V_XOFF}")
        A(f"v_add_u32 v{V_XOFF+4}, {8*18432}, v{V_E}")
        for i in range(1, 4):
            A(f"v_add_u32 v{V_XOFF+i}, {128*i}, v{V_XOFF}")
            A(f"v_add_u32 v{V_XOFF+4+i}, {128*i}, v{V_XOFF+4}")
        self.C("w DMA voffsets")
        A(f"s_mul_i32 s{S_T0}, s{S_WAVE}, 448")
        A(f"s_movk_i32 s{S_T1}, -18")
        A(f"s_movk_i32 s{S_T2}, 576")
        A(f"s_movk_i32 s{S_T3}, 1152")
        A(f"v_add_u32 v{V_E}, s{S_T0}, v0")
        for i in range(7):
            q = V_E
            t = V_E + 4
            if i:
                A(f"v_add_u32 v{q}, 64, v{q}")
            A(f"v_mul_u32_u24 v{t}, 3641, v{q}")
            A(f"v_lshrrev_b32 v{t}, 16, v{t}")
            A(f"v_mad_i32_i24 v{t+1}, v{t}, s{S_T1}, v{q}")
            A(f"v_lshrrev_b32 v{t+2}, 5, v{t}")
            A(f"v_and_b32 v{t+3}, 0x13, v{t}")
            A(f"v_and_b32 v{t+4}, 4, v{t}")
            A(f"v_lshl_or_b32 v{t+3}, v{t+4}, 1, v{t+3}")
            A(f"v_bfe_u32 v{t+4}, v{t}, 3, 1")
            A(f"v_lshl_or_b32 v{t+3}, v{t+4}, 2, v{t+3}")
            A(f"v_mad_u32_u24 v{t+3}, v{t+2}, s{S_T2}, v{t+3}")
            A(f"v_mul_u32_u24 v{t+3}, s{S_T3}, v{t+3}")
            A(f"v_lshl_add_u32 v{V_WOFF+i}, v{t+1}, 4, v{t+3}")
            if i % 4:
                A(f"v_subrev_u32 v{V_WOFF+i}, {(i%4)*1024}, v{V_WOFF+i}")
        self.C("LDS read addresses")
        A(f"v_lshrrev_b32 v{V_E}, 5, v0")
        A(f"v_lshlrev_b32 v{V_E}, 4, v{V_E}")
        A(f"v_bfe_u32 v{V_E+1}, v0, 2, 3")
        A(f"v_add_u32 v{V_E}, v{V_E}, v{V_E+1}")
        A(f"v_mul_u32_u24 v{V_E}, 288, v{V_E}")
        A(f"v_and_b32 v{V_E+1}, 3, v0")
        A(f"v_lshl_add_u32 v{V_WLANE}, v{V_E+1}, 3, v{V_E}")
        A(f"v_add_u32 v{V_WRD}, {WBASE}, v{V_WLANE}")
        A(f"v_bfe_u32 v{V_E}, v0, 3, 1")
        A(f"v_lshlrev_b32 v{V_E}, 14, v{V_E}")
        A(f"v_and_b32 v{V_E+1}, 7, v0")
        A(f"v_lshl_add_u32 v{V_E}, v{V_E+1}, 7, v{V_E}")
        A(f"v_bfe_u32 v{V_E+1}, v0, 1, 3")
        A(f"v_lshrrev_b32 v{V_E+2}, 4, v0")
        A(f"v_xor_b32 v{V_E+1}, v{V_E+1}, v{V_E+2}")
        A(f"v_lshl_add_u32 v{V_XRD0}, v{V_E+1}, 4, v{V_E}")
        A(f"v_xor_b32 v{V_XRD1}, 64, v{V_XRD0}")
        self.C("SRDs")
        A("s_waitcnt lgkmcnt(0)")
        self.stamp(1)
        A(f"s_mul_i32 s{S_T0}, s{S_BG}, {16*18432}")
        A(f"s_add_u32 s{SRD_X}, s{S_X}, s{S_T0}")
        A(f"s_addc_u32 s{SRD_X+1}, s{S_X+1}, 0")
        A(f"s_mov_b32 s{SRD_X+2}, {16*18432}")
        A(f"s_mov_b32 s{SRD_X+3}, 0x20000")
        A(f"s_mul_i32 s{S_T1}, s{S_CG}, 288")
        A(f"s_add_u32 s{SRD_W}, s{S_W}, s{S_T1}")
        A(f"s_addc_u32 s{SRD_W+1}, s{S_W+1}, 0")
        A(f"s_sub_u32 s{SRD_W+2}, {W_BYTES}, s{S_T1}")
        A(f"s_mov_b32 s{SRD_W+3}, 0x20000")
        A(f"s_mov_b32 s{S_T3}, s{SRD_W+2}")
        A(f"s_add_u32 s{SRD_O}, s{S_OUT}, s{S_T0}")
        A(f"s_addc_u32 s{SRD_O+1}, s{S_OUT+1}, 0")
        A(f"s_mov_b32 s{SRD_O+2}, {16*18432}")
        A(f"s_mov_b32 s{SRD_O+3}, 0x20000")
        self.C("BN parameter loads (one channel per thread)")
        A(f"global_load_ushort v{V_PAR}, v{V_T+2}, s[{S_MEAN}:{S_MEAN+1}]")
        A(f"global_load_ushort v{V_PAR+1}, v{V_T+2}, s[{S_VAR}:{S_VAR+1}]")
        A(f"global_load_ushort v{V_PAR+2}, v{V_T+2}, s[{S_G}:{S_G+1}]")
        A(f"global_load_ushort v{V_PAR+3}, v{V_T+2}, s[{S_B}:{S_B+1}]")
        self.C("dispatch on wave id")
        A(f"s_cmp_eq_u32 s{S_WAVE}, 1")
        A("s_cbranch_scc1 L_w1")
        A(f"s_cmp_eq_u32 s{S_WAVE}, 2")
        A("s_cbranch_scc1 L_w2")
        A(f"s_cmp_eq_u32 s{S_WAVE}, 3")
        A("s_cbranch_scc1 L_w3")

    def params_compute(self):
        A = self.A
        P = V_PAR
        T = V_E
        for i in range(4):
            A(f"v_lshlrev_b32 v{P+i}, 16, v{P+i}")
        A(f"v_add_f32 v{T}, 0x3727c5ac, v{P+1}")
        A(f"v_cvt_pk_bf16_f32 v{T}, v{T}, v{T}")
        A(f"v_lshlrev_b32 v{T}, 16, v{T}")
        A(f"v_sqrt_f32 v{T}, v{T}")
        A("s_nop 0")
        A(f"v_cvt_pk_bf16_f32 v{T}, v{T}, v{T}")
        A(f"v_lshlrev_b32 v{T}, 16, v{T}")
        A(f"v_rcp_f32 v{T}, v{T}")
        A("s_nop 0")
        A(f"v_cvt_pk_bf16_f32 v{T}, v{T}, v{T}")
        A(f"v_lshlrev_b32 v{T}, 16, v{T}")
        A(f"v_mul_f32 v{T}, v{P+2}, v{T}")
        A(f"v_cvt_pk_bf16_f32 v{T}, v{T}, v{T}")
        A(f"v_lshlrev_b32 v{T}, 16, v{T}")
        A(f"v_fma_f32 v{T+1}, -v{P}, v{T}, v{P+3}")
        A(f"v_mul_f32 v{T}, 0x3fb8aa3b, v{T}")
        A(f"v_mul_f32 v{T+1}, 0x3fb8aa3b, v{T+1}")
        A(f"v_lshlrev_b32 v{T+2}, 2, v{V_T+1}")
        A(f"v_add_u32 v{T+2}, {PARAM}, v{T+2}")
        A(f"ds_write_b32 v{T+2}, v{T}")
        A(f"ds_write_b32 v{T+2}, v{T+1} offset:1024")

    def wave_main(self, wv):
        A = self.A
        nw = 7 if wv < 3 else 6
        win = nw + 4
        self.label(f"L_w{wv}")
        self.C("prologue DMA: x0, w0, w1, x1a | x1b, w2")
        A(f"s_mov_b32 s{S_XSOFF}, 0")
        A(f"s_mov_b32 s{S_WSOFF}, 0")
        A(f"s_mov_b32 s{S_XM0}, 0")
        A(f"s_mov_b32 s{S_WDST}, {WBASE}")
        for g in self.x_dma(wv, 0, S_XM0, S_XSOFF) + self.x_dma(wv, 1, S_XM0, S_XSOFF) + self.w_dma(wv, S_WDST, S_WSOFF):
            for i in g: A(i)
        A(f"s_mov_b32 s{S_WSOFF}, {WSTEP}")
        A(f"s_mov_b32 s{S_WDST}, {WBASE+WBUF}")
        for g in self.w_dma(wv, S_WDST, S_WSOFF):
            for i in g: A(i)
        A(f"s_mov_b32 s{S_XSOFF}, 128")
        A(f"s_mov_b32 s{S_XM0}, {XBUF}")
        for g in self.x_dma(wv, 0, S_XM0, S_XSOFF) + self.x_dma(wv, 1, S_XM0, S_XSOFF):
            for i in g: A(i)
        A(f"s_mov_b32 s{S_WSOFF}, {2*WSTEP}")
        A(f"s_mov_b32 s{S_WDST}, {WBASE+2*WBUF}")
        for g in self.w_dma(wv, S_WDST, S_WSOFF)[:1]:
            for i in g: A(i)
        self.stamp(2)
        total = 17 + 2 * nw
        A(f"s_waitcnt vmcnt({total})")
        self.params_compute()
        self.C("zero accumulators")
        for r in range(ACC0, 256):
            A(f"v_mov_b32 v{r}, 0")
        A(f"s_mov_b32 s{S_WCUR}, {WBASE}")
        A(f"s_mov_b32 s{S_XM0}, 0")
        A(f"s_mov_b32 s{S_CNT}, 9")
        if self.o.get("stamps"):
            A(f"v_mov_b32 v23, {PARAM + 576 + wv * 96}")
        A(f"s_waitcnt vmcnt({total - 8 - nw})")
        A("s_barrier")
        self.stamp(3)
        for i in self.w_reads(wv, 0) + self.x_reads(wv, 0):
            A(i)
        self.loop(wv)
        self.stamp(4)
        A("s_branch L_epi")

    def step(self, wv, odd, late_dma, early_dma_fn):
        A = self.A
        h = odd
        nw = 7 if wv < 3 else 6
        win = nw + 4
        groups = self.mfma_groups(wv, h)
        n = [len(g) for g in groups]
        start = [sum(n[:i]) for i in range(5)]
        total = sum(n)
        fill = [[] for _ in range(total)]
        pre = [[] for _ in range(total)]

        def spread(items, lo, hi):
            m = len(items)
            for idx, it in enumerate(items):
                pos = lo + (idx * (hi - lo)) // m
                fill[pos].extend(it if isinstance(it, list) else [it])

        xr1 = self.x_reads(wv, 1) if not odd else []
        r0 = self.w_reads(wv, 1) + xr1[0:3]
        r1 = self.w_reads(wv, 2) + xr1[3:6]
        r2 = self.w_reads(wv, 3) + self.w_reads(wv, 4) + xr1[6:9]
        spread(r0, start[0] + 0, start[0] + 16)
        spread(r1, start[1] + 0, start[1] + 16)
        spread(r2, start[2] + 0, start[2] + 16)
        for gi in range(4):
            pre[start[gi]].append("s_waitcnt lgkmcnt(0)" if gi != 3 else f"s_waitcnt vmcnt({win}) lgkmcnt(0)")
        pre[start[3]].append("s_barrier")
        if self.o.get("stamps"):
            pre[start[0]].append("s_memtime s[80:81]")
            fill[start[1]].extend(["v_mov_b32 v22, s80", "ds_write_b32 v23, v22", "v_add_u32 v23, 4, v23"])
        setup, early = early_dma_fn()
        assert len(setup) <= 7
        for idx, g in enumerate(setup):
            fill[start[2] + 16 + idx].extend(g)
        r3 = self.w_reads(wv, 0) + (self.x_reads(wv, 0) if odd else [])
        spread(r3, start[3] + 0, start[3] + 22)
        off = wv
        ne = len(early)
        for idx, g in enumerate(early):
            pos = start[3] + 3 + off + idx * 6
            fill[pos].extend(g)
        for idx, g in enumerate(late_dma):
            pos = start[0] + 3 + off + idx * 7
            fill[pos].extend(g)
        flat = [m for g in groups for m in g]
        for i, m in enumerate(flat):
            for x in pre[i]: A(x)
            A(m)
            for x in fill[i]: A(x)

    def loop(self, wv):
        A = self.A
        nw = 7 if wv < 3 else 6
        NE = 5

        def window(p):
            return self.x_dma(wv, p, S_XM0, S_XSOFF) + self.w_dma(wv, S_WDST, S_WSOFF)

        def early_even():
            st = [[f"s_mov_b32 s{S_WDST}, s{S_WCUR}", f"s_add_u32 s{S_WCUR}, s{S_WCUR}, {WBUF}"],
                  [f"s_cmp_eq_u32 s{S_WCUR}, {WEND}", f"s_cselect_b32 s{S_WCUR}, {WBASE}, s{S_WCUR}"],
                  [f"v_add_u32 v{V_WRD}, s{S_WCUR}, v{V_WLANE}", f"s_add_u32 s{S_WSOFF}, s{S_WSOFF}, {WSTEP}"],
                  [f"s_cmp_lt_u32 s{S_WSOFF}, {18*WSTEP}", f"s_cselect_b32 s{SRD_W+2}, s{S_T3}, 0"],
                  [f"s_add_u32 s{S_XSOFF}, s{S_XSOFF}, 128", f"v_xor_b32 v{V_XRD0}, {XBUF}, v{V_XRD0}"],
                  [f"s_cmp_lt_u32 s{S_XSOFF}, {9*128}", f"s_cselect_b32 s{SRD_X+2}, {16*18432}, 0"],
                  [f"v_xor_b32 v{V_XRD1}, {XBUF}, v{V_XRD1}"]]
            return st, window(0)[:NE]

        def early_odd():
            st = [[f"s_mov_b32 s{S_WDST}, s{S_WCUR}", f"s_add_u32 s{S_WCUR}, s{S_WCUR}, {WBUF}"],
                  [f"s_cmp_eq_u32 s{S_WCUR}, {WEND}", f"s_cselect_b32 s{S_WCUR}, {WBASE}, s{S_WCUR}"],
                  [f"v_add_u32 v{V_WRD}, s{S_WCUR}, v{V_WLANE}", f"s_add_u32 s{S_WSOFF}, s{S_WSOFF}, {WSTEP}"],
                  [f"s_cmp_lt_u32 s{S_WSOFF}, {18*WSTEP}", f"s_cselect_b32 s{SRD_W+2}, s{S_T3}, 0"]]
            return st, window(1)[:NE]

        late_even = window(1)[NE:]
        late_odd = window(0)[NE:]
        self.late_even = late_even
        self.label(f"L_loop{wv}")
        self.step(wv, 0, late_even, early_even)
        self.step(wv, 1, late_odd, early_odd)
        A(f"s_xor_b32 s{S_XM0}, s{S_XM0}, {XBUF}")
        A(f"s_sub_u32 s{S_CNT}, s{S_CNT}, 1")
        A(f"s_cmp_lg_u32 s{S_CNT}, 0")
        A(f"s_cbranch_scc1 L_loop{wv}")

    def epilogue(self):
        A = self.A
        self.label("L_epi")
        T = V_E
        A(f"s_lshr_b32 s{S_T0}, s{S_WAVE}, 1")
        A(f"s_and_b32 s{S_T1}, s{S_WAVE}, 1")
        A(f"v_lshrrev_b32 v{V_T}, 4, v0")
        A(f"v_lshlrev_b32 v{V_T+1}, 4, v{V_T}")
        A(f"v_add_u32 v{V_T+1}, {PARAM}, v{V_T+1}")
        A(f"s_mul_i32 s{S_T2}, s{S_T1}, 320")
        A(f"v_add_u32 v{V_T+2}, s{S_T2}, v{V_T+1}")
        for jj in range(4):
            A(f"ds_read_b128 v[{V_PAR+8*jj}:{V_PAR+8*jj+3}], v{V_T+2} offset:{64*jj}")
            A(f"ds_read_b128 v[{V_PAR+8*jj+4}:{V_PAR+8*jj+7}], v{V_T+2} offset:{64*jj+1024}")
        A(f"ds_read_b128 v[{V_PAR+32}:{V_PAR+35}], v{V_T+1} offset:256")
        A(f"ds_read_b128 v[{V_PAR+36}:{V_PAR+39}], v{V_T+1} offset:{256+1024}")
        A(f"v_and_b32 v1, 15, v0")
        A(f"v_mul_u32_u24 v1, 18432, v1")
        A(f"s_mul_i32 s{S_T2}, s{S_T0}, {8*1152}")
        A(f"s_mul_i32 s{S_T3}, s{S_CG}, 288")
        A(f"s_add_u32 s{S_T2}, s{S_T2}, s{S_T3}")
        A(f"v_add_u32 v1, s{S_T2}, v1")
        A(f"v_bfe_u32 v3, v0, 4, 1")
        A(f"v_lshrrev_b32 v4, 5, v0")
        A(f"v_mul_u32_u24 v2, 1152, v3")
        A(f"v_lshl_add_u32 v2, v4, 4, v2")
        A(f"v_add_u32 v2, v2, v1")
        A(f"s_mul_i32 s{S_T2}, s{S_T1}, {4*1152}")
        A(f"s_add_u32 s{S_T2}, s{S_T2}, 128")
        A(f"v_add_u32 v2, s{S_T2}, v2")
        A(f"v_lshl_add_u32 v1, v3, 5, v1")
        A(f"v_lshl_add_u32 v1, v4, 4, v1")
        A(f"s_mul_i32 s{S_T2}, s{S_T1}, 160")
        A(f"v_add_u32 v1, s{S_T2}, v1")
        A(f"v_add_u32 v5, {4*1152}, v1")
        A(f"s_mov_b32 s{S_T0}, 0x3fb8aa3b")
        A(f"s_mov_b32 s{S_T1}, 0x3fb8aa3b")
        A("s_waitcnt lgkmcnt(0)")
        self.stamp(5)

        def tile(acc, par, dst, tmp):
            y, e = tmp, tmp + 4
            ins = []
            ins.append(f"v_pk_fma_f32 v[{y}:{y+1}], v[{acc}:{acc+1}], v[{par}:{par+1}], v[{par+4}:{par+5}]")
            ins.append(f"v_pk_fma_f32 v[{y+2}:{y+3}], v[{acc+2}:{acc+3}], v[{par+2}:{par+3}], v[{par+6}:{par+7}]")
            for i in range(4):
                ins.append(f"v_exp_f32 v{e+i}, -v{y+i}")
            ins.append(f"v_pk_fma_f32 v[{e}:{e+1}], v[{e}:{e+1}], s[{S_T0}:{S_T1}], s[{S_T0}:{S_T1}]")
            ins.append(f"v_pk_fma_f32 v[{e+2}:{e+3}], v[{e+2}:{e+3}], s[{S_T0}:{S_T1}], s[{S_T0}:{S_T1}]")
            for i in range(4):
                ins.append(f"v_rcp_f32 v{e+i}, v{e+i}")
            ins.append(f"v_pk_mul_f32 v[{y}:{y+1}], v[{y}:{y+1}], v[{e}:{e+1}]")
            ins.append(f"v_pk_mul_f32 v[{y+2}:{y+3}], v[{y+2}:{y+3}], v[{e+2}:{e+3}]")
            ins.append(f"v_cvt_pk_bf16_f32 v{dst}, v{y}, v{y+1}")
            ins.append(f"v_cvt_pk_bf16_f32 v{dst+1}, v{y+2}, v{y+3}")
            return ins

        def pair(accA, parA, accB, parB, vaddr, off, slot):
            d = V_E + 32 + 4 * (slot % 4)
            a = tile(accA, parA, d, V_E + 16 * (slot % 2))
            b = tile(accB, parB, d + 2, V_E + 16 * (slot % 2) + 8)
            for x, y in zip(a, b):
                A(x); A(y)
            A("s_nop 1")
            A(f"v_permlane16_swap_b32 v{d}, v{d+2}")
            A(f"v_permlane16_swap_b32 v{d+1}, v{d+3}")
            A(f"buffer_store_dwordx4 v[{d}:{d+3}], v{vaddr}, s[{SRD_O}:{SRD_O+3}], 0 offen offset:{off}{self.stflag}")

        slot = 0
        for s in range(8):
            for pr in range(2):
                va = 1 if s < 4 else 5
                pair(ACC(2 * pr, s), V_PAR + 16 * pr, ACC(2 * pr + 1, s), V_PAR + 16 * pr + 8, va, (s % 4) * 1152 + pr * 64, slot)
                slot += 1
        for s2 in range(2):
            pair(ACC(4, 2 * s2), V_PAR + 32, ACC(4, 2 * s2 + 1), V_PAR + 32, 2, 2 * s2 * 1152, slot)
            slot += 1
        self.stamp(6)
        if self.o.get("stamps"):
            A("s_waitcnt vmcnt(0)")
            self.stamp(7)
            A(f"s_memrealtime s[{S_TS+28}:{S_TS+29}]")
            A("s_waitcnt lgkmcnt(0)")
            A(f"s_lshl_b32 s{S_T0}, s2, 2")
            A(f"s_add_u32 s{S_T0}, s{S_T0}, s{S_WAVE}")
            A(f"s_lshl_b32 s{S_T0}, s{S_T0}, 8")
            A(f"v_mov_b32 v1, s{S_T0}")
            A(f"s_mul_i32 s{S_T1}, s{S_WAVE}, 96")
            A(f"s_add_u32 s{S_T1}, s{S_T1}, {PARAM + 576}")
            A(f"v_and_b32 v3, 31, v0")
            A(f"v_lshlrev_b32 v3, 2, v3")
            A(f"v_add_u32 v4, s{S_T1}, v3")
            A(f"ds_read_b32 v4, v4")
            A(f"v_add_u32 v3, v3, v1")
            A("s_waitcnt lgkmcnt(0)")
            A(f"global_store_dword v3, v4, s[{S_WS}:{S_WS+1}] offset:128")
            for i in range(8):
                A(f"v_mov_b32 v2, s{S_TS+2*i}")
                A(f"global_store_dword v1, v2, s[{S_WS}:{S_WS+1}] offset:{4*i}")
            A(f"v_mov_b32 v2, s{S_TS+30}")
            A(f"global_store_dword v1, v2, s[{S_WS}:{S_WS+1}] offset:32")
            A(f"v_mov_b32 v2, s{S_TS+28}")
            A(f"global_store_dword v1, v2, s[{S_WS}:{S_WS+1}] offset:36")
        self.label("L_end")
        A("s_endpgm")

    def emit(self):
        out = [HEADER.rstrip("\n")]
        out.append(f"; @launch grid=(256,1,1) block=(256,1,1) lds={LDS_BYTES}")
        out.append('.amdgcn_target "amdgcn-amd-amdhsa--gfx950"')
        out.append(".text")
        out.append(f".globl {NAME}")
        out.append(".p2align 8")
        out.append(f".type {NAME},@function")
        out.append(f"{NAME}:")
        self.prologue()
        for wv in range(4):
            self.wave_main(wv)
        self.epilogue()
        out += self.L
        out.append('.section .rodata,"a"')
        out.append(".p2align 6")
        out.append(f".amdhsa_kernel {NAME}")
        out.append("  .amdhsa_next_free_vgpr 392")
        out.append("  .amdhsa_next_free_sgpr 96")
        out.append("  .amdhsa_accum_offset 256")
        out.append("  .amdhsa_group_segment_fixed_size 0")
        out.append("  .amdhsa_kernarg_size 72")
        out.append("  .amdhsa_user_sgpr_count 2")
        out.append("  .amdhsa_user_sgpr_kernarg_segment_ptr 1")
        out.append("  .amdhsa_system_sgpr_workgroup_id_x 1")
        out.append("  .amdhsa_float_denorm_mode_32 3")
        out.append(".end_amdhsa_kernel")
        return "\n".join(out) + "\n"


if __name__ == "__main__":
    opts = {}
    path = sys.argv[1]
    for a in sys.argv[2:]:
        k, _, v = a.partition("=")
        opts[k] = int(v) if v else 1
    open(path, "w").write(Gen(opts).emit())
```

```python
import sys

NAME = "standalone__batchnorm__sampling_kernel"

HEADER = """; Kernarg layout for this problem (72 bytes, ptrs only, base s[0:1]):
"""

X_BYTES = 1024 * 16 * 576 * 2
W_BYTES = 3 * 576 * 576 * 2
XBUF = 32768
WBASE = 65536
WBUF = 27648
WEND = WBASE + 3 * WBUF
PARAM = WEND
LDS_BYTES = PARAM + 2048
WSTEP = 32 * 1152
ACC0 = 112

S_X, S_W, S_MEAN, S_VAR, S_G, S_B, S_OUT, S_DBG = 4, 6, 8, 10, 12, 14, 16, 18
SRD_X, SRD_W, SRD_O = 20, 24, 28
S_WAVE, S_BG, S_CG = 32, 33, 34
S_WSOFF, S_XSOFF, S_WCUR, S_XM0, S_CNT = 35, 36, 37, 38, 39
S_T0, S_T1, S_T2, S_T3 = 40, 41, 42, 43
S_WDST = 44
S_ODD = 45
S_WS = 46
S_TS = 48

V_WOFF = 1
V_XOFF = 8
V_WLANE, V_WRD, V_XRD0, V_XRD1 = 16, 17, 18, 19
V_T = 20
V_WLANE2, V_WRD2 = 104, 105
V_PAR = 24
V_E = 64
V_LANE = 0


def XF(h, p):
    b = (h * 9 + p) * 4
    return f"a[{b}:{b+3}]"


def WFb(jj, k):
    return 72 + (jj * 3 + k) * 4


def ACC(jj, s):
    return ACC0 + (jj * 8 + s) * 4 if jj < 4 else ACC0 + 128 + s * 4


class Gen:
    def __init__(self, opts):
        self.L = []
        self.o = opts
        self.stflag = {0: "", 1: " nt", 2: " sc1", 3: " sc0 sc1", 4: " sc0", 5: " nt sc1", 6: " nt sc0 sc1"}[opts.get("st", 0)]

    def A(self, s):
        self.L.append("    " + s)

    def label(self, s):
        self.L.append(s + ":")

    def C(self, s):
        self.L.append("    ; " + s)

    def mfma_groups(self, wv, h):
        ph, ch = wv >> 1, wv & 1
        groups = []
        for jj in range(5):
            g = []
            sl = range(8) if jj < 4 else range(4 * ch, 4 * ch + 4)
            for s in sl:
                up = (s % 2 == 0) if ph == 0 else (s % 2 == 1)
                ks = [0, 1, 2] if up else [2, 1, 0]
                for k in ks:
                    p = s + k - 1 if ph == 0 else s + k
                    if p < 0 or p > 8:
                        continue
                    c = ACC(jj, s if jj < 4 else s - 4 * ch)
                    wb = WFb(jj, k)
                    g.append(f"v_mfma_f32_16x16x32_bf16 v[{c}:{c+3}], a[{wb}:{wb+3}], {XF(h, p)}, v[{c}:{c+3}]")
            groups.append(g)
        return groups

    def w_reads(self, wv, jj):
        ch = wv & 1
        out = []
        for k in range(3):
            for e in range(2):
                b = WFb(jj, k) + 2 * e
                if jj < 4:
                    out.append(f"ds_read_b64_tr_b16 a[{b}:{b+1}], v{V_WRD} offset:{k*9216 + e*2304 + ch*128 + jj*32}")
                else:
                    out.append(f"ds_read_b64_tr_b16 a[{b}:{b+1}], v{V_WRD2} offset:{k*9216 + e*2304}")
        return out

    def x_reads(self, wv, h):
        ph = wv >> 1
        out = []
        for p in range(9):
            s = p + 7 * ph
            out.append(f"ds_read_b128 {XF(h, p)}, v{V_XRD0 + h} offset:{s*1024}")
        return out

    def w_dma(self, wv, dst_sgpr, soff):
        n = 7 if wv < 3 else 6
        out = []
        for i in range(n):
            ins = []
            if i % 4 == 0:
                ins.append(f"s_add_u32 m0, s{dst_sgpr}, {wv*7168 + i*1024}")
                ins.append("s_nop 0")
            ins.append(f"buffer_load_dwordx4 v{V_WOFF+i}, s[{SRD_W}:{SRD_W+3}], s{soff} offen offset:{(i%4)*1024} lds")
            out.append(ins)
        return out

    def x_dma(self, wv, p, dst_sgpr, soff):
        out = []
        for i in range(4):
            ins = []
            if i == 0:
                ins.append(f"s_add_u32 m0, s{dst_sgpr}, {p*16384 + wv*4096}")
                ins.append("s_nop 0")
            ins.append(f"buffer_load_dwordx4 v{V_XOFF+4*p+i}, s[{SRD_X}:{SRD_X+3}], s{soff} offen offset:{i*1024} lds")
            out.append(ins)
        return out

    def stamp(self, idx):
        if self.o.get("stamps"):
            self.A(f"s_memtime s[{S_TS+2*idx}:{S_TS+2*idx+1}]")

    def prologue(self):
        A = self.A
        A("s_cmp_ge_u32 s2, 256")
        A("s_cbranch_scc1 L_end")
        A(f"s_load_dwordx16 s[4:19], s[0:1], 0")
        if self.o.get("stamps"):
            A(f"s_load_dwordx2 s[{S_WS}:{S_WS+1}], s[0:1], 64")
            A(f"s_memrealtime s[{S_TS+30}:{S_TS+31}]")
        self.stamp(0)
        A(f"v_lshrrev_b32 v{V_T}, 6, v0")
        A(f"v_mov_b32 v{V_T+1}, v0")
        A(f"v_readfirstlane_b32 s{S_WAVE}, v{V_T}")
        A(f"v_and_b32 v0, 63, v0")
        self.C("workgroup decode: xcd = id&7, j = id>>3, cg = j&3, bg = xcd*8 + (j>>2)")
        A(f"s_and_b32 s{S_T0}, s2, 7")
        A(f"s_lshr_b32 s{S_T1}, s2, 3")
        A(f"s_and_b32 s{S_CG}, s{S_T1}, 3")
        A(f"s_lshr_b32 s{S_T1}, s{S_T1}, 2")
        A(f"s_lshl_b32 s{S_T0}, s{S_T0}, 3")
        A(f"s_add_u32 s{S_BG}, s{S_T0}, s{S_T1}")
        self.C("param channel index = min(cg*144 + tid, 575) * 2 -> v21")
        A(f"s_mul_i32 s{S_T3}, s{S_CG}, 144")
        A(f"v_add_u32 v{V_T+2}, s{S_T3}, v{V_T+1}")
        A(f"v_min_u32 v{V_T+2}, 575, v{V_T+2}")
        A(f"v_lshlrev_b32 v{V_T+2}, 1, v{V_T+2}")
        self.C("x DMA voffsets: (8p + (l>>3))*18432 + ((l&7) ^ (4p + (l>>4)))*16 + (4v+i)*1152 - i*1024")
        A(f"v_lshrrev_b32 v{V_E}, 3, v0")
        A(f"v_mul_u32_u24 v{V_E}, 18432, v{V_E}")
        A(f"v_and_b32 v{V_E+1}, 7, v0")
        A(f"v_lshrrev_b32 v{V_E+2}, 4, v0")
        A(f"v_xor_b32 v{V_E+1}, v{V_E+1}, v{V_E+2}")
        A(f"v_lshl_add_u32 v{V_E}, v{V_E+1}, 4, v{V_E}")
        A(f"s_mul_i32 s{S_T0}, s{S_WAVE}, {4*1152}")
        A(f"v_add_u32 v{V_XOFF}, s{S_T0}, v{V_E}")
        A(f"v_xor_b32 v{V_E}, 64, v{V_XOFF}")
        A(f"v_add_u32 v{V_XOFF+4}, {8*18432}, v{V_E}")
        for i in range(1, 4):
            A(f"v_add_u32 v{V_XOFF+i}, {128*i}, v{V_XOFF}")
            A(f"v_add_u32 v{V_XOFF+4+i}, {128*i}, v{V_XOFF+4}")
        self.C("w DMA voffsets")
        A(f"s_mul_i32 s{S_T0}, s{S_WAVE}, 448")
        A(f"s_movk_i32 s{S_T1}, -18")
        A(f"s_movk_i32 s{S_T2}, 576")
        A(f"s_movk_i32 s{S_T3}, 1152")
        A(f"v_add_u32 v{V_E}, s{S_T0}, v0")
        for i in range(7):
            q = V_E
            t = V_E + 4
            if i:
                A(f"v_add_u32 v{q}, 64, v{q}")
            A(f"v_mul_u32_u24 v{t}, 3641, v{q}")
            A(f"v_lshrrev_b32 v{t}, 16, v{t}")
            A(f"v_mad_i32_i24 v{t+1}, v{t}, s{S_T1}, v{q}")
            A(f"v_lshrrev_b32 v{t+2}, 5, v{t}")
            A(f"v_and_b32 v{t+3}, 0x13, v{t}")
            A(f"v_and_b32 v{t+4}, 4, v{t}")
            A(f"v_lshl_or_b32 v{t+3}, v{t+4}, 1, v{t+3}")
            A(f"v_bfe_u32 v{t+4}, v{t}, 3, 1")
            A(f"v_lshl_or_b32 v{t+3}, v{t+4}, 2, v{t+3}")
            A(f"v_mad_u32_u24 v{t+3}, v{t+2}, s{S_T2}, v{t+3}")
            A(f"v_mul_u32_u24 v{t+3}, s{S_T3}, v{t+3}")
            A(f"v_lshl_add_u32 v{V_WOFF+i}, v{t+1}, 4, v{t+3}")
            if i % 4:
                A(f"v_subrev_u32 v{V_WOFF+i}, {(i%4)*1024}, v{V_WOFF+i}")
        self.C("LDS read addresses")
        A(f"v_lshrrev_b32 v{V_E}, 5, v0")
        A(f"v_lshlrev_b32 v{V_E}, 4, v{V_E}")
        A(f"v_bfe_u32 v{V_E+1}, v0, 2, 3")
        A(f"v_add_u32 v{V_E}, v{V_E}, v{V_E+1}")
        A(f"v_mul_u32_u24 v{V_E}, 288, v{V_E}")
        A(f"v_and_b32 v{V_E+1}, 3, v0")
        A(f"v_lshl_add_u32 v{V_WLANE}, v{V_E+1}, 3, v{V_E}")
        A(f"s_and_b32 s{S_ODD}, s{S_CG}, 1")
        A(f"s_lshl_b32 s{S_T0}, s{S_ODD}, 8")
        A(f"s_sub_u32 s{S_T0}, 256, s{S_T0}")
        A(f"v_add_u32 v{V_WLANE2}, s{S_T0}, v{V_WLANE}")
        A(f"s_lshl_b32 s{S_T0}, s{S_ODD}, 5")
        A(f"v_add_u32 v{V_WLANE}, s{S_T0}, v{V_WLANE}")
        A(f"v_add_u32 v{V_WRD}, {WBASE}, v{V_WLANE}")
        A(f"v_add_u32 v{V_WRD2}, {WBASE}, v{V_WLANE2}")
        A(f"v_bfe_u32 v{V_E}, v0, 3, 1")
        A(f"v_lshlrev_b32 v{V_E}, 14, v{V_E}")
        A(f"v_and_b32 v{V_E+1}, 7, v0")
        A(f"v_lshl_add_u32 v{V_E}, v{V_E+1}, 7, v{V_E}")
        A(f"v_bfe_u32 v{V_E+1}, v0, 1, 3")
        A(f"v_lshrrev_b32 v{V_E+2}, 4, v0")
        A(f"v_xor_b32 v{V_E+1}, v{V_E+1}, v{V_E+2}")
        A(f"v_lshl_add_u32 v{V_XRD0}, v{V_E+1}, 4, v{V_E}")
        A(f"v_xor_b32 v{V_XRD1}, 64, v{V_XRD0}")
        self.C("SRDs")
        A("s_waitcnt lgkmcnt(0)")
        self.stamp(1)
        A(f"s_mul_i32 s{S_T0}, s{S_BG}, {16*18432}")
        A(f"s_add_u32 s{SRD_X}, s{S_X}, s{S_T0}")
        A(f"s_addc_u32 s{SRD_X+1}, s{S_X+1}, 0")
        A(f"s_mov_b32 s{SRD_X+2}, {16*18432}")
        A(f"s_mov_b32 s{SRD_X+3}, 0x20000")
        A(f"s_mul_i32 s{S_T1}, s{S_CG}, 288")
        A(f"s_add_u32 s{SRD_W}, s{S_W}, s{S_T1}")
        A(f"s_addc_u32 s{SRD_W+1}, s{S_W+1}, 0")
        A(f"s_sub_u32 s{SRD_W+2}, {W_BYTES}, s{S_T1}")
        A(f"s_mov_b32 s{SRD_W+3}, 0x20000")
        A(f"s_mov_b32 s{S_T3}, s{SRD_W+2}")
        A(f"s_add_u32 s{SRD_O}, s{S_OUT}, s{S_T0}")
        A(f"s_addc_u32 s{SRD_O+1}, s{S_OUT+1}, 0")
        A(f"s_mov_b32 s{SRD_O+2}, {16*18432}")
        A(f"s_mov_b32 s{SRD_O+3}, 0x20000")
        self.C("BN parameter loads (one channel per thread)")
        A(f"global_load_ushort v{V_PAR}, v{V_T+2}, s[{S_MEAN}:{S_MEAN+1}]")
        A(f"global_load_ushort v{V_PAR+1}, v{V_T+2}, s[{S_VAR}:{S_VAR+1}]")
        A(f"global_load_ushort v{V_PAR+2}, v{V_T+2}, s[{S_G}:{S_G+1}]")
        A(f"global_load_ushort v{V_PAR+3}, v{V_T+2}, s[{S_B}:{S_B+1}]")
        self.C("dispatch on wave id")
        A(f"s_cmp_eq_u32 s{S_WAVE}, 1")
        A("s_cbranch_scc1 L_w1")
        A(f"s_cmp_eq_u32 s{S_WAVE}, 2")
        A("s_cbranch_scc1 L_w2")
        A(f"s_cmp_eq_u32 s{S_WAVE}, 3")
        A("s_cbranch_scc1 L_w3")

    def params_compute(self):
        A = self.A
        P = V_PAR
        T = V_E
        for i in range(4):
            A(f"v_lshlrev_b32 v{P+i}, 16, v{P+i}")
        A(f"v_add_f32 v{T}, 0x3727c5ac, v{P+1}")
        A(f"v_cvt_pk_bf16_f32 v{T}, v{T}, v{T}")
        A(f"v_lshlrev_b32 v{T}, 16, v{T}")
        A(f"v_sqrt_f32 v{T}, v{T}")
        A("s_nop 0")
        A(f"v_cvt_pk_bf16_f32 v{T}, v{T}, v{T}")
        A(f"v_lshlrev_b32 v{T}, 16, v{T}")
        A(f"v_rcp_f32 v{T}, v{T}")
        A("s_nop 0")
        A(f"v_cvt_pk_bf16_f32 v{T}, v{T}, v{T}")
        A(f"v_lshlrev_b32 v{T}, 16, v{T}")
        A(f"v_mul_f32 v{T}, v{P+2}, v{T}")
        A(f"v_cvt_pk_bf16_f32 v{T}, v{T}, v{T}")
        A(f"v_lshlrev_b32 v{T}, 16, v{T}")
        A(f"v_fma_f32 v{T+1}, -v{P}, v{T}, v{P+3}")
        A(f"v_mul_f32 v{T}, 0x3fb8aa3b, v{T}")
        A(f"v_mul_f32 v{T+1}, 0x3fb8aa3b, v{T+1}")
        A(f"v_lshlrev_b32 v{T+2}, 2, v{V_T+1}")
        A(f"v_add_u32 v{T+2}, {PARAM}, v{T+2}")
        A(f"ds_write_b32 v{T+2}, v{T}")
        A(f"ds_write_b32 v{T+2}, v{T+1} offset:1024")

    def wave_main(self, wv):
        A = self.A
        nw = 7 if wv < 3 else 6
        self.label(f"L_w{wv}")
        self.C("prologue DMA: x0, w0, w1 ; x1, w2 are issued inside the peeled start of step 0")
        A(f"s_mov_b32 s{S_XSOFF}, 0")
        A(f"s_mov_b32 s{S_WSOFF}, 0")
        A(f"s_mov_b32 s{S_XM0}, 0")
        A(f"s_mov_b32 s{S_WDST}, {WBASE}")
        for g in self.x_dma(wv, 0, S_XM0, S_XSOFF) + self.x_dma(wv, 1, S_XM0, S_XSOFF) + self.w_dma(wv, S_WDST, S_WSOFF):
            for i in g: A(i)
        A(f"s_mov_b32 s{S_WSOFF}, {WSTEP}")
        A(f"s_mov_b32 s{S_WDST}, {WBASE+WBUF}")
        for g in self.w_dma(wv, S_WDST, S_WSOFF):
            for i in g: A(i)
        A(f"s_mov_b32 s{S_XSOFF}, 128")
        A(f"s_mov_b32 s{S_XM0}, {XBUF}")
        A(f"s_mov_b32 s{S_WSOFF}, {2*WSTEP}")
        A(f"s_mov_b32 s{S_WDST}, {WBASE+2*WBUF}")
        first = self.x_dma(wv, 0, S_XM0, S_XSOFF) + self.x_dma(wv, 1, S_XM0, S_XSOFF) + self.w_dma(wv, S_WDST, S_WSOFF)
        npre = self.o.get("npre", 0)
        for g in first[:npre]:
            for i in g: A(i)
        first = first[npre:]
        fg = self.o.get("fgap", 4)
        first_late = [(wv + idx * fg, g) for idx, g in enumerate(first)]
        self.stamp(2)
        total = 8 + 2 * nw + npre
        A(f"s_waitcnt vmcnt({total})")
        self.params_compute()
        self.C("zero accumulators")
        for r in range(ACC0, 256):
            A(f"v_mov_b32 v{r}, 0")
        A(f"s_mov_b32 s{S_WCUR}, {WBASE}")
        A(f"s_mov_b32 s{S_CNT}, 9")
        if self.o.get("stamps"):
            A(f"v_mov_b32 v23, {PARAM + 576 + wv * 96}")
        A(f"s_waitcnt vmcnt({total - 8 - nw})")
        A("s_barrier")
        self.stamp(3)
        for i in self.w_reads(wv, 0) + self.x_reads(wv, 0):
            A(i)
        self.loop(wv, first_late, 8 + nw)
        self.stamp(4)
        A("s_branch L_epi")

    def win_split(self, wv, p):
        order = self.o.get("order", 0)
        gap = self.o.get("gap", 6)
        xs = self.x_dma(wv, p, S_XM0, S_XSOFF)
        ws = self.w_dma(wv, S_WDST, S_WSOFF)
        seq = xs + ws if order == 0 else ws + xs
        n34 = sum(len(g) for g in self.mfma_groups(wv, 0)[3:])
        early, late = [], []
        for idx, g in enumerate(seq):
            pos = 1 + (wv * gap) // 4 + idx * gap
            if pos < n34:
                early.append((pos, g))
            else:
                late.append((pos - n34, g))
        return early, late

    def step(self, wv, odd, setup, lo=0, hi=5, late_override=None, vm_override=None):
        A = self.A
        h = odd
        nw = 7 if wv < 3 else 6
        win = nw + 4
        groups = self.mfma_groups(wv, h)
        n = [len(g) for g in groups]
        start = [sum(n[:i]) for i in range(6)]
        total = sum(n)
        fill = [[] for _ in range(total)]
        pre = [[] for _ in range(total)]

        def spread(items, lo_, hi_):
            m = len(items)
            for idx, it in enumerate(items):
                pos = lo_ + (idx * (hi_ - lo_)) // m
                fill[pos].extend(it if isinstance(it, list) else [it])

        xr1 = self.x_reads(wv, 1) if not odd else []
        r0 = self.w_reads(wv, 1) + xr1[0:3]
        r1 = self.w_reads(wv, 2) + xr1[3:6]
        r2 = self.w_reads(wv, 3) + self.w_reads(wv, 4) + xr1[6:9]
        spread(r0, start[0] + 0, start[0] + 16)
        spread(r1, start[1] + 0, start[1] + 16)
        spread(r2, start[2] + 0, start[2] + 16)
        for gi in range(3):
            pre[start[gi]].append("s_waitcnt lgkmcnt(0)")
        vm = win if vm_override is None else vm_override
        if self.o.get("stamps"):
            pre[start[0]].append("s_memtime s[80:81]")
            fill[start[1]].extend(["v_mov_b32 v22, s80", "ds_write_b32 v23, v22", "v_add_u32 v23, 4, v23"])
        assert len(setup) <= 7
        for idx, g in enumerate(setup):
            fill[start[2] + 16 + idx].extend(g)
        fill[start[3] - 1].append(f"s_waitcnt vmcnt({vm}) lgkmcnt(0)")
        pre[start[3]].append("s_barrier")
        r3 = self.w_reads(wv, 0) + (self.x_reads(wv, 0) if odd else [])
        spread(r3, start[3] + 0, start[3] + 22)
        early, _ = self.win_split(wv, odd)
        _, late = self.win_split(wv, 1 - odd)
        if late_override is not None:
            late = late_override
        for pos, g in early:
            fill[start[3] + pos].extend(g)
        for pos, g in late:
            assert pos < start[2] + 16, pos
            fill[pos].extend(g)
        flat = [m for g in groups for m in g]
        for i in range(start[lo], start[hi]):
            for x in pre[i]: A(x)
            A(flat[i])
            for x in fill[i]: A(x)

    def setups(self):
        ev = [[f"s_mov_b32 s{S_WDST}, s{S_WCUR}", f"s_add_u32 s{S_WCUR}, s{S_WCUR}, {WBUF}"],
              [f"s_cmp_eq_u32 s{S_WCUR}, {WEND}", f"s_cselect_b32 s{S_WCUR}, {WBASE}, s{S_WCUR}"],
              [f"v_add_u32 v{V_WRD}, s{S_WCUR}, v{V_WLANE}", f"s_add_u32 s{S_WSOFF}, s{S_WSOFF}, {WSTEP}"],
              [f"s_cmp_lt_u32 s{S_WSOFF}, {18*WSTEP}", f"s_cselect_b32 s{SRD_W+2}, s{S_T3}, 0", f"v_add_u32 v{V_WRD2}, s{S_WCUR}, v{V_WLANE2}"],
              [f"s_add_u32 s{S_XSOFF}, s{S_XSOFF}, 128", f"v_xor_b32 v{V_XRD0}, {XBUF}, v{V_XRD0}"],
              [f"s_cmp_lt_u32 s{S_XSOFF}, {9*128}", f"s_cselect_b32 s{SRD_X+2}, {16*18432}, 0"],
              [f"v_xor_b32 v{V_XRD1}, {XBUF}, v{V_XRD1}", f"s_xor_b32 s{S_XM0}, s{S_XM0}, {XBUF}"]]
        return ev, ev[:4]

    def loop(self, wv, first_late, first_vm):
        A = self.A
        ev, od = self.setups()
        self.step(wv, 0, ev, 0, 3, late_override=first_late, vm_override=first_vm)
        A(f"s_branch L_mid{wv}")
        self.label(f"L_loop{wv}")
        self.step(wv, 0, ev, 0, 3)
        self.label(f"L_mid{wv}")
        self.step(wv, 0, ev, 3, 5)
        self.step(wv, 1, od)
        A(f"s_sub_u32 s{S_CNT}, s{S_CNT}, 1")
        A(f"s_cmp_lg_u32 s{S_CNT}, 0")
        A(f"s_cbranch_scc1 L_loop{wv}")

    def epilogue(self):
        A = self.A
        self.label("L_epi")
        seg = self.o.get("seg", 128)
        A(f"s_lshr_b32 s{S_T0}, s{S_WAVE}, 1")
        A(f"s_and_b32 s{S_T1}, s{S_WAVE}, 1")
        A(f"v_lshrrev_b32 v{V_T}, 4, v0")
        A(f"v_lshlrev_b32 v{V_T+1}, 4, v{V_T}")
        A(f"v_add_u32 v{V_T+1}, {PARAM}, v{V_T+1}")
        A(f"s_lshl_b32 s{S_T2}, s{S_T1}, 8")
        A(f"s_lshl_b32 s{S_T3}, s{S_ODD}, 6")
        A(f"s_add_u32 s{S_T2}, s{S_T2}, s{S_T3}")
        A(f"v_add_u32 v{V_T+2}, s{S_T2}, v{V_T+1}")
        A(f"s_lshl_b32 s{S_T3}, s{S_ODD}, 9")
        A(f"s_sub_u32 s{S_T3}, 512, s{S_T3}")
        A(f"v_add_u32 v{V_T+1}, s{S_T3}, v{V_T+1}")
        for jj in range(4):
            A(f"ds_read_b128 v[{V_PAR+8*jj}:{V_PAR+8*jj+3}], v{V_T+2} offset:{64*jj}")
            A(f"ds_read_b128 v[{V_PAR+8*jj+4}:{V_PAR+8*jj+7}], v{V_T+2} offset:{64*jj+1024}")
        A(f"ds_read_b128 v[{V_PAR+32}:{V_PAR+35}], v{V_T+1}")
        A(f"ds_read_b128 v[{V_PAR+36}:{V_PAR+39}], v{V_T+1} offset:1024")
        A(f"s_mul_i32 s{S_T2}, s{S_WAVE}, 18432")
        A(f"v_and_b32 v6, 15, v0")
        A(f"v_lshlrev_b32 v7, 7, v6")
        A(f"v_add_u32 v7, s{S_T2}, v7")
        A(f"v_bfe_u32 v8, v0, 4, 1")
        A(f"v_lshl_add_u32 v7, v8, 3, v7")
        A(f"v_lshrrev_b32 v9, 5, v0")
        A(f"v_and_b32 v10, 7, v0")
        A(f"v_xor_b32 v10, v10, v9")
        A(f"v_lshl_add_u32 v1, v10, 4, v7")
        for jj in range(1, 4):
            A(f"v_xor_b32 v{1+jj}, {32*jj}, v1")
        A(f"v_lshlrev_b32 v5, 5, v6")
        A(f"v_lshl_add_u32 v5, v9, 4, v5")
        A(f"v_lshl_add_u32 v5, v8, 3, v5")
        A(f"v_add_u32 v5, s{S_T2}, v5")
        A(f"s_mul_i32 s{S_T0}, s{S_T0}, {8*1152}")
        A(f"s_mul_i32 s{S_T3}, s{S_CG}, 288")
        A(f"s_add_u32 s{S_T0}, s{S_T0}, s{S_T3}")
        if seg == 128:
            A(f"v_lshrrev_b32 v6, 3, v0")
            A(f"v_and_b32 v7, 7, v0")
            A(f"v_xor_b32 v8, v6, v7")
            A(f"v_lshlrev_b32 v8, 4, v8")
            A(f"v_lshl_add_u32 v8, v6, 7, v8")
            A(f"v_add_u32 v11, s{S_T2}, v8")
            A(f"v_mul_u32_u24 v12, 18432, v6")
            A(f"v_lshl_add_u32 v12, v7, 4, v12")
            A(f"s_lshl_b32 s{S_T3}, s{S_T1}, 7")
            A(f"s_add_u32 s{S_T3}, s{S_T3}, s{S_T0}")
            A(f"s_lshl_b32 s{S_WSOFF}, s{S_ODD}, 5")
            A(f"s_add_u32 s{S_T3}, s{S_T3}, s{S_WSOFF}")
            A(f"v_add_u32 v12, s{S_T3}, v12")
            A(f"v_add_u32 v13, {8*18432}, v12")
            A(f"v_add_u32 v14, {4*1152}, v12")
            A(f"v_add_u32 v15, {4*1152}, v13")
        else:
            A(f"v_lshrrev_b32 v6, 2, v0")
            A(f"v_and_b32 v7, 3, v0")
            A(f"v_and_b32 v8, 7, v6")
            A(f"v_xor_b32 v8, v8, v7")
            A(f"v_lshlrev_b32 v8, 4, v8")
            A(f"v_lshl_add_u32 v8, v6, 7, v8")
            A(f"v_add_u32 v11, s{S_T2}, v8")
            A(f"v_xor_b32 v10, 64, v11")
            A(f"v_mul_u32_u24 v12, 18432, v6")
            A(f"v_lshl_add_u32 v12, v7, 4, v12")
            A(f"s_lshl_b32 s{S_T3}, s{S_T1}, 7")
            A(f"s_add_u32 s{S_T3}, s{S_T3}, s{S_T0}")
            A(f"s_lshl_b32 s{S_WSOFF}, s{S_ODD}, 5")
            A(f"s_add_u32 s{S_T3}, s{S_T3}, s{S_WSOFF}")
            A(f"v_add_u32 v12, s{S_T3}, v12")
            A(f"v_add_u32 v14, {4*1152}, v12")
        A(f"v_lshlrev_b32 v16, 4, v0")
        A(f"v_add_u32 v16, s{S_T2}, v16")
        A(f"v_bfe_u32 v6, v0, 1, 4")
        A(f"v_mul_u32_u24 v17, 18432, v6")
        A(f"v_lshrrev_b32 v6, 5, v0")
        A(f"v_mul_u32_u24 v6, 1152, v6")
        A(f"v_add_u32 v17, v17, v6")
        A(f"v_and_b32 v6, 1, v0")
        A(f"v_lshl_add_u32 v17, v6, 4, v17")
        A(f"s_mul_i32 s{S_T3}, s{S_T1}, {4*1152}")
        A(f"s_add_u32 s{S_T3}, s{S_T3}, s{S_T0}")
        A(f"s_lshl_b32 s{S_WSOFF}, s{S_ODD}, 8")
        A(f"s_sub_u32 s{S_WSOFF}, 256, s{S_WSOFF}")
        A(f"s_add_u32 s{S_T3}, s{S_T3}, s{S_WSOFF}")
        A(f"v_add_u32 v17, s{S_T3}, v17")
        A(f"s_mov_b32 s{S_T0}, 0x3fb8aa3b")
        A(f"s_mov_b32 s{S_T1}, 0x3fb8aa3b")
        A("s_waitcnt vmcnt(0) lgkmcnt(0)")
        A("s_barrier")
        self.stamp(5)

        def tile(acc, par, dst, tmp):
            y, e = tmp, tmp + 4
            ins = []
            ins.append(f"v_pk_fma_f32 v[{y}:{y+1}], v[{acc}:{acc+1}], v[{par}:{par+1}], v[{par+4}:{par+5}]")
            ins.append(f"v_pk_fma_f32 v[{y+2}:{y+3}], v[{acc+2}:{acc+3}], v[{par+2}:{par+3}], v[{par+6}:{par+7}]")
            for i in range(4):
                ins.append(f"v_exp_f32 v{e+i}, -v{y+i}")
            ins.append(f"v_pk_fma_f32 v[{e}:{e+1}], v[{e}:{e+1}], s[{S_T0}:{S_T1}], s[{S_T0}:{S_T1}]")
            ins.append(f"v_pk_fma_f32 v[{e+2}:{e+3}], v[{e+2}:{e+3}], s[{S_T0}:{S_T1}], s[{S_T0}:{S_T1}]")
            for i in range(4):
                ins.append(f"v_rcp_f32 v{e+i}, v{e+i}")
            ins.append(f"v_pk_mul_f32 v[{y}:{y+1}], v[{y}:{y+1}], v[{e}:{e+1}]")
            ins.append(f"v_pk_mul_f32 v[{y+2}:{y+3}], v[{y+2}:{y+3}], v[{e+2}:{e+3}]")
            ins.append(f"v_cvt_pk_bf16_f32 v{dst}, v{y}, v{y+1}")
            ins.append(f"v_cvt_pk_bf16_f32 v{dst+1}, v{y+2}, v{y+3}")
            return ins

        fl = self.stflag
        flo = self.stflag if self.o.get("oddwt") else ""
        pend = []

        def pair(accA, parA, wA, accB, parB, wB, slot):
            d = V_E + 32 + 4 * (slot % 2)
            a = tile(accA, parA, d, V_E + 16 * (slot % 2))
            b = tile(accB, parB, d + 2, V_E + 16 * (slot % 2) + 8)
            for x, y in zip(a, b):
                if self.o.get("novalu") and not x.startswith("v_cvt"): continue
                A(x); A(y)
            A(f"ds_write_b64 v{wA[0]}, v[{d}:{d+1}] offset:{wA[1]}")
            A(f"ds_write_b64 v{wB[0]}, v[{d+2}:{d+3}] offset:{wB[1]}")

        RB = ACC0
        slot = 0
        stores = []
        def flush_stores(n=2):
            if stores:
                A(f"s_waitcnt lgkmcnt({n})")
                for st in stores: A(st)
                stores.clear()
        for s_ in range(8):
            for pr in range(2):
                pair(ACC(2 * pr, s_), V_PAR + 16 * pr, (1 + 2 * pr, s_ * 2048), ACC(2 * pr + 1, s_), V_PAR + 16 * pr + 8, (2 + 2 * pr, s_ * 2048), slot)
                slot += 1
                if pr == 0:
                    flush_stores()
            r0, r1 = ACC(0, s_), ACC(1, s_)
            if seg == 128:
                A(f"ds_read_b128 v[{r0}:{r0+3}], v11 offset:{s_*2048}")
                A(f"ds_read_b128 v[{r1}:{r1+3}], v11 offset:{s_*2048+1024}")
                va, vb = (12, 13) if s_ < 4 else (14, 15)
                stores.append(f"buffer_store_dwordx4 v[{r0}:{r0+3}], v{va}, s[{SRD_O}:{SRD_O+3}], 0 offen offset:{(s_%4)*1152}{fl}")
                stores.append(f"buffer_store_dwordx4 v[{r1}:{r1+3}], v{vb}, s[{SRD_O}:{SRD_O+3}], 0 offen offset:{(s_%4)*1152}{fl}")
            else:
                A(f"ds_read_b128 v[{r0}:{r0+3}], v11 offset:{s_*2048}")
                A(f"ds_read_b128 v[{r1}:{r1+3}], v10 offset:{s_*2048}")
                va = 12 if s_ < 4 else 14
                stores.append(f"buffer_store_dwordx4 v[{r0}:{r0+3}], v{va}, s[{SRD_O}:{SRD_O+3}], 0 offen offset:{(s_%4)*1152}{fl}")
                stores.append(f"buffer_store_dwordx4 v[{r1}:{r1+3}], v{va}, s[{SRD_O}:{SRD_O+3}], 0 offen offset:{(s_%4)*1152+64}{fl}")
        for s2 in range(2):
            pair(ACC(4, 2 * s2), V_PAR + 32, (5, 16384 + 2 * s2 * 512), ACC(4, 2 * s2 + 1), V_PAR + 32, (5, 16384 + (2 * s2 + 1) * 512), slot)
            slot += 1
            flush_stores()
            r0 = ACC(2, s2)
            A(f"ds_read_b128 v[{r0}:{r0+3}], v16 offset:{16384 + s2*1024}")
            stores.append(f"buffer_store_dwordx4 v[{r0}:{r0+3}], v17, s[{SRD_O}:{SRD_O+3}], 0 offen offset:{2*s2*1152}{flo}")
        flush_stores(0)
        self.stamp(6)
        if self.o.get("stamps"):
            A("s_waitcnt vmcnt(0)")
            self.stamp(7)
            A(f"s_memrealtime s[{S_TS+28}:{S_TS+29}]")
            A("s_waitcnt lgkmcnt(0)")
            A(f"s_lshl_b32 s{S_T0}, s2, 2")
            A(f"s_add_u32 s{S_T0}, s{S_T0}, s{S_WAVE}")
            A(f"s_lshl_b32 s{S_T0}, s{S_T0}, 8")
            A(f"v_mov_b32 v1, s{S_T0}")
            A(f"s_mul_i32 s{S_T1}, s{S_WAVE}, 96")
            A(f"s_add_u32 s{S_T1}, s{S_T1}, {PARAM + 576}")
            A(f"v_and_b32 v3, 31, v0")
            A(f"v_lshlrev_b32 v3, 2, v3")
            A(f"v_add_u32 v4, s{S_T1}, v3")
            A(f"ds_read_b32 v4, v4")
            A(f"v_add_u32 v3, v3, v1")
            A("s_waitcnt lgkmcnt(0)")
            A(f"global_store_dword v3, v4, s[{S_WS}:{S_WS+1}] offset:128")
            for i in range(8):
                A(f"v_mov_b32 v2, s{S_TS+2*i}")
                A(f"global_store_dword v1, v2, s[{S_WS}:{S_WS+1}] offset:{4*i}")
            A(f"v_mov_b32 v2, s{S_TS+30}")
            A(f"global_store_dword v1, v2, s[{S_WS}:{S_WS+1}] offset:32")
            A(f"v_mov_b32 v2, s{S_TS+28}")
            A(f"global_store_dword v1, v2, s[{S_WS}:{S_WS+1}] offset:36")
        if self.o.get("dbg"):
            A("v_mov_b32 v1, 0")
            A(f"s_not_b32 s{S_T0}, s{S_TS+30}")
            A(f"v_mov_b32 v2, s{S_T0}")
            A(f"v_mov_b32 v3, s{S_TS+28}")
            A("s_mov_b64 exec, 1")
            A(f"global_atomic_umax v1, v2, s[{S_DBG}:{S_DBG+1}] offset:32")
            A(f"global_atomic_umax v1, v3, s[{S_DBG}:{S_DBG+1}] offset:36")
            A(f"v_mov_b32 v2, s{S_TS+30}")
            A(f"global_atomic_umax v1, v2, s[{S_DBG}:{S_DBG+1}] offset:40")
            for i in range(7):
                A(f"s_sub_u32 s{S_T0}, s{S_TS+2*i+2}, s{S_TS+2*i}")
                A(f"v_mov_b32 v2, s{S_T0}")
                A(f"global_atomic_add v1, v2, s[{S_DBG}:{S_DBG+1}] offset:{4*i}")
        self.label("L_end")
        A("s_endpgm")

    def emit(self):
        out = [HEADER.rstrip("\n")]
        out.append(f"; @launch grid=(256,1,1) block=(256,1,1) lds={LDS_BYTES}")
        out.append('.amdgcn_target "amdgcn-amd-amdhsa--gfx950"')
        out.append(".text")
        out.append(f".globl {NAME}")
        out.append(".p2align 8")
        out.append(f".type {NAME},@function")
        out.append(f"{NAME}:")
        self.prologue()
        for wv in range(4):
            self.wave_main(wv)
        self.epilogue()
        out += self.L
        out.append('.section .rodata,"a"')
        out.append(".p2align 6")
        out.append(f".amdhsa_kernel {NAME}")
        out.append("  .amdhsa_next_free_vgpr 392")
        out.append("  .amdhsa_next_free_sgpr 96")
        out.append("  .amdhsa_accum_offset 256")
        out.append("  .amdhsa_group_segment_fixed_size 0")
        out.append("  .amdhsa_kernarg_size 72")
        out.append("  .amdhsa_user_sgpr_count 2")
        out.append("  .amdhsa_user_sgpr_kernarg_segment_ptr 1")
        out.append("  .amdhsa_system_sgpr_workgroup_id_x 1")
        out.append("  .amdhsa_float_denorm_mode_32 3")
        out.append(".end_amdhsa_kernel")
        return "\n".join(out) + "\n"


if __name__ == "__main__":
    opts = {}
    path = sys.argv[1]
    for a in sys.argv[2:]:
        k, _, v = a.partition("=")
        opts[k] = int(v) if v else 1
    open(path, "w").write(Gen(opts).emit())
```

```python
import sys

NAME = "standalone__batchnorm__sampling_kernel"

HEADER = """; Kernarg layout for this problem (72 bytes, ptrs only, base s[0:1]):
"""

W_BYTES = 3 * 576 * 576 * 2
XG_BYTES = 16 * 18432
XBUF = 32768
WBASE = 65536
WBUF = 27648
WEND = WBASE + 3 * WBUF
PARAM = WEND
ZERO = PARAM + 2048
OSTG = ZERO + 64
STMP = OSTG + 8192
LDS_BYTES = STMP
WSTEP = 32 * 1152
ACC0 = 112
LOG2E = 0x3fb8aa3b

S_X, S_W, S_MEAN, S_VAR, S_G, S_B, S_OUT, S_DBG = 4, 6, 8, 10, 12, 14, 16, 18
SRD_X, SRD_W, SRD_O, SRD_T = 20, 24, 28, 32
S_WAVE, S_BG, S_CG, S_J = 36, 37, 38, 39
S_WSOFF, S_XSOFF, S_WCUR, S_XM0, S_CNT, S_WDST = 40, 41, 42, 43, 44, 45
S_T0, S_T1, S_T2, S_T3 = 46, 47, 48, 49
S_L = 50
S_ODD, S_PH, S_CH = 52, 53, 54
S_TOFF, S_TSTEP = 55, 56
S_PC = 58
S_WS = 60
S_ST = 62
S_TS = 64

V_WOFF = 1
V_XOFF = 8
V_WLANE, V_WRD, V_XRD0, V_XRD1, V_WLANE2, V_WRD2, V_TOUCH, V_TDST = 16, 17, 18, 19, 20, 21, 22, 23
V_RAW = 24
V_PWR = 28
V_WT01, V_WT2, V_WO01, V_WO2 = 29, 30, 31, 32
V_XT = 33
V_XT0 = 35
V_XT9 = 37
V_PRF, V_PRO = 39, 40
V_SW = 41
V_SWO, V_SR, V_SRO = 43, 44, 45
V_ST = 46
V_STO = 48
V_STMP0, V_STMP1 = 49, 50
V_PAR = 52
V_E = 92


def XF(st, q):
    b = (st * 10 + q) * 4
    return b


def WFb(jj, k):
    return 120 + (jj * 3 + k) * 4


TA, TB = 180, 216


def ACC(jj, s):
    return ACC0 + (jj * 8 + s) * 4 if jj < 4 else ACC0 + 128 + s * 4


def mfma(c, a, b):
    return f"v_mfma_f32_16x16x32_bf16 v[{c}:{c+3}], a[{a}:{a+3}], a[{b}:{b+3}], v[{c}:{c+3}]"


class Gen:
    def __init__(self, opts):
        self.L = []
        self.o = opts
        fl = {0: "", 1: " nt", 2: " sc1", 3: " sc0 sc1"}
        self.stA = fl[opts.get("stA", 0)]
        self.stB = fl[opts.get("stB", 0)]

    def A(self, s):
        self.L.append("    " + s)

    def label(self, s):
        self.L.append(s + ":")

    def C(self, s):
        self.L.append("    ; " + s)

    def raw(self, s):
        self.L.append(s)

    def stamp(self, idx):
        if self.o.get("stamps"):
            self.A(f"s_memtime s[{S_TS+2*idx}:{S_TS+2*idx+1}]")
            if idx == 3: self.A(f"s_memrealtime s[{S_TS+26}:{S_TS+27}]")
            if idx == 4: self.A(f"s_memrealtime s[{S_TS+24}:{S_TS+25}]")

    def mfma_groups(self, wv, h):
        ph, ch = wv >> 1, wv & 1
        groups = []
        for jj in range(5):
            g = []
            sl = range(8) if jj < 4 else range(4 * ch, 4 * ch + 4)
            for s in sl:
                up = (s % 2 == 0) if ph == 0 else (s % 2 == 1)
                for k in ([0, 1, 2] if up else [2, 1, 0]):
                    q = s + k
                    if (ph == 0 and q == 0) or (ph == 1 and q == 9):
                        continue
                    g.append(mfma(ACC(jj, s if jj < 4 else s - 4 * ch), WFb(jj, k), XF(h, q)))
            groups.append(g)
        return groups

    def w_reads(self, jj):
        out = []
        for k in range(3):
            for e in range(2):
                b = WFb(jj, k) + 2 * e
                if jj < 4:
                    out.append(f"ds_read_b64_tr_b16 a[{b}:{b+1}], v{V_WRD} offset:{k*9216 + e*2304 + jj*32}")
                else:
                    out.append(f"ds_read_b64_tr_b16 a[{b}:{b+1}], v{V_WRD2} offset:{k*9216 + e*2304}")
        return out

    def x_reads(self, wv, h):
        ph = wv >> 1
        out = []
        for q in (range(1, 10) if ph == 0 else range(0, 9)):
            s = 8 * ph - 1 + q
            b = XF(h, q)
            out.append(f"ds_read_b128 a[{b}:{b+3}], v{V_XRD0 + h} offset:{s*1024}")
        return out

    def w_dma(self, wv):
        n = 7 if wv < 3 else 6
        out = []
        for i in range(n):
            ins = []
            if i % 4 == 0:
                ins.append(f"s_add_u32 m0, s{S_WDST}, {wv*7168 + i*1024}")
                ins.append("s_nop 0")
            ins.append(f"buffer_load_dwordx4 v{V_WOFF+i}, s[{SRD_W}:{SRD_W+3}], s{S_WSOFF} offen offset:{(i%4)*1024} lds")
            out.append(ins)
        return out

    def x_dma(self, wv, p):
        out = []
        for i in range(4):
            ins = []
            if i == 0:
                ins.append(f"s_add_u32 m0, s{S_XM0}, {p*16384 + wv*4096}")
                ins.append("s_nop 0")
            ins.append(f"buffer_load_dwordx4 v{V_XOFF+4*p+i}, s[{SRD_X}:{SRD_X+3}], s{S_XSOFF} offen offset:{i*1024} lds")
            out.append(ins)
        return out

    def touch(self):
        return [f"s_add_u32 s{S_TOFF}, s{S_TOFF}, s{S_TSTEP}",
                f"buffer_load_dword v{V_TDST}, v{V_TOUCH}, s[{SRD_T}:{SRD_T+3}], s{S_TOFF} offen"]

    def prologue(self):
        A = self.A
        o = self.o
        E = V_E
        A("s_cmp_ge_u32 s2, 256")
        A("s_cbranch_scc1 L_end0")
        A(f"s_load_dwordx16 s[4:19], s[0:1], 0")
        if o.get("stamps"):
            A(f"s_load_dwordx2 s[{S_WS}:{S_WS+1}], s[0:1], 64")
            A(f"s_memrealtime s[{S_TS+30}:{S_TS+31}]")
        self.stamp(0)
        A(f"v_lshrrev_b32 v{E}, 6, v0")
        A(f"v_lshlrev_b32 v{V_PWR}, 2, v0")
        A(f"v_readfirstlane_b32 s{S_WAVE}, v{E}")
        A(f"v_and_b32 v0, 63, v0")
        self.C("workgroup decode: xcd = id&7, j = id>>3, cg = j&3, bg = xcd*8 + (j>>2)")
        A(f"s_and_b32 s{S_T0}, s2, 7")
        A(f"s_lshr_b32 s{S_J}, s2, 3")
        A(f"s_and_b32 s{S_CG}, s{S_J}, 3")
        A(f"s_lshr_b32 s{S_T1}, s{S_J}, 2")
        A(f"s_lshl_b32 s{S_T0}, s{S_T0}, 3")
        A(f"s_add_u32 s{S_BG}, s{S_T0}, s{S_T1}")
        if o.get("codepf"):
            self.C("pull the kernel's own code into L2: WG j, wave v reads lines (j*4+v)*NL .. +NL-1")
            nl = o.get("codepf")
            A(f"s_getpc_b64 s[{S_PC}:{S_PC+1}]")
            self.label("L_pc")
            A(f"s_lshl_b32 s{S_T0}, s{S_J}, 2")
            A(f"s_add_u32 s{S_T0}, s{S_T0}, s{S_WAVE}")
            A(f"s_mul_i32 s{S_T0}, s{S_T0}, {nl*128}")
            A(f"v_and_b32 v{E}, {nl-1}, v0")
            A(f"v_lshlrev_b32 v{E}, 7, v{E}")
            A(f"v_add_u32 v{E}, s{S_T0}, v{E}")
            A(f"v_min_u32 v{E}, L_code_end-L_pc-4, v{E}")
            A(f"global_load_dword v{V_TDST}, v{E}, s[{S_PC}:{S_PC+1}]")
        self.C("x DMA voffsets: (8p + (l>>3))*18432 + ((l&7) ^ (4p + (l>>4)))*16 + (4v+i)*1152 - i*1024")
        A(f"v_lshrrev_b32 v{E}, 3, v0")
        A(f"v_mul_u32_u24 v{E}, 18432, v{E}")
        A(f"v_and_b32 v{E+1}, 7, v0")
        A(f"v_lshrrev_b32 v{E+2}, 4, v0")
        A(f"v_xor_b32 v{E+1}, v{E+1}, v{E+2}")
        A(f"v_lshl_add_u32 v{E}, v{E+1}, 4, v{E}")
        A(f"s_mul_i32 s{S_T0}, s{S_WAVE}, {4*1152}")
        A(f"v_add_u32 v{V_XOFF}, s{S_T0}, v{E}")
        A(f"v_xor_b32 v{E}, 64, v{V_XOFF}")
        A(f"v_add_u32 v{V_XOFF+4}, {8*18432}, v{E}")
        for i in range(1, 4):
            A(f"v_add_u32 v{V_XOFF+i}, {128*i}, v{V_XOFF}")
            A(f"v_add_u32 v{V_XOFF+4+i}, {128*i}, v{V_XOFF+4}")
        self.C("w voffset recurrence state: t = Q*3641 (Q = 448*wave + 64*i + lane), lc = 16*lane + 1024*7*wave")
        A(f"s_mul_i32 s{S_T0}, s{S_WAVE}, 448")
        A(f"v_add_u32 v{E}, s{S_T0}, v0")
        A(f"v_lshlrev_b32 v{E+1}, 4, v{E}")
        A(f"v_mul_u32_u24 v{E}, 3641, v{E}")
        A(f"s_mul_i32 s{S_T0}, s{S_BG}, {XG_BYTES}")
        A(f"s_mul_i32 s{S_T1}, s{S_CG}, 288")
        A(f"s_mov_b32 s{SRD_X+2}, {XG_BYTES}")
        A(f"s_mov_b32 s{SRD_X+3}, 0x20000")
        A(f"s_mov_b32 s{SRD_W+3}, 0x20000")
        A(f"s_sub_u32 s{SRD_W+2}, {W_BYTES}, s{S_T1}")
        A(f"s_lshl_b32 s{S_XM0}, s{S_WAVE}, 12")
        A(f"s_mul_i32 s{S_WDST}, s{S_WAVE}, 7168")
        A(f"s_movk_i32 s{S_T2}, 864")
        A(f"s_movk_i32 s{S_T3}, 4608")
        A(f"s_mov_b32 s{S_CNT}, 626688")
        A(f"s_mov_b32 m0, s{S_XM0}")

        def woff(i):
            t, lc, a = E, E + 1, E + 2
            if i:
                A(f"v_add_u32 v{t}, {64*3641}, v{t}")
            A(f"v_lshrrev_b32 v{a}, 16, v{t}")
            A(f"v_bfe_u32 v{a+1}, v{t}, 18, 1")
            A(f"v_bfe_u32 v{a+2}, v{t}, 19, 1")
            A(f"v_lshrrev_b32 v{a+3}, 21, v{t}")
            if i == 4:
                A(f"v_add_u32 v{lc}, 4096, v{lc}")
            A(f"v_sub_u32 v{a+1}, v{a+1}, v{a+2}")
            A(f"v_mad_u32_u24 v{a}, v{a}, s{S_T2}, v{lc}")
            A(f"v_mad_i32_i24 v{a}, v{a+1}, s{S_T3}, v{a}")
            A(f"v_mad_u32_u24 v{V_WOFF+i}, v{a+3}, s{S_CNT}, v{a}")

        self.C("L2 prefetch (touch) address: wave&1 == 0: w lines, 1: x lines")
        A(f"s_lshr_b32 s{S_PH}, s{S_WAVE}, 1")
        A(f"s_and_b32 s{S_CH}, s{S_WAVE}, 1")
        A("s_cbranch_scc1 L_tx")
        A(f"v_min_u32 v{E+2}, 53, v0")
        A(f"v_mul_u32_u24 v{E+3}, 3641, v{E+2}")
        A(f"v_lshrrev_b32 v{E+3}, 16, v{E+3}")
        A(f"v_mul_u32_u24 v{E+3}, {663552-18*128}, v{E+3}")
        A(f"v_lshl_add_u32 v{V_TOUCH}, v{E+2}, 7, v{E+3}")
        A(f"s_mul_i32 s{S_TOFF}, s{S_J}, {18*128}")
        A(f"v_add_u32 v{V_TOUCH}, s{S_TOFF}, v{V_TOUCH}")
        A(f"s_mov_b32 s{S_TSTEP}, {64*1152}")
        A("s_branch L_tdone")
        self.label("L_tx")
        A(f"s_lshl_b32 s{S_TOFF}, s{S_CG}, 6")
        A(f"v_add_u32 v{E+2}, s{S_TOFF}, v0")
        A(f"v_mul_u32_u24 v{V_TOUCH}, 1152, v{E+2}")
        A(f"s_movk_i32 s{S_TSTEP}, 128")
        self.label("L_tdone")
        A(f"s_mul_i32 s{S_TOFF}, s{S_TSTEP}, s{S_PH}")
        A(f"s_mov_b32 s{SRD_T+3}, 0x20000")
        A("s_waitcnt lgkmcnt(0)")
        self.stamp(1)
        A(f"s_add_u32 s{SRD_X}, s{S_X}, s{S_T0}")
        A(f"s_addc_u32 s{SRD_X+1}, s{S_X+1}, 0")
        A(f"s_cmp_eq_u32 s{S_CH}, 1")
        A(f"s_cselect_b32 s{SRD_T}, s{SRD_X}, s{S_W}")
        A(f"s_cselect_b32 s{SRD_T+1}, s{SRD_X+1}, s{S_W+1}")
        A(f"s_cselect_b32 s{SRD_T+2}, s{SRD_X+2}, s{SRD_W+2}")
        pt = o.get("ptouch", 15)
        if pt:
            if pt != 15:
                A(f"s_lshr_b32 s{S_ODD}, {pt}, s{S_WAVE}")
                A(f"s_and_b32 s{S_ODD}, s{S_ODD}, 1")
                A("s_cbranch_scc0 L_nopt")
            A(f"buffer_load_dword v{V_TDST}, v{V_TOUCH}, s[{SRD_T}:{SRD_T+3}], s{S_TOFF} offen")
            self.label("L_nopt")
        A(f"s_add_u32 s{SRD_W}, s{S_W}, s{S_T1}")
        A(f"s_addc_u32 s{SRD_W+1}, s{S_W+1}, 0")
        def dma0(n):
            if n < 8:
                p, i = divmod(n, 4)
                if n == 4:
                    A(f"s_add_u32 m0, s{S_XM0}, 16384")
                    A("s_nop 0")
                A(f"buffer_load_dwordx4 v{V_XOFF+4*p+i}, s[{SRD_X}:{SRD_X+3}], 0 offen offset:{i*1024} lds")
            else:
                i = n - 8
                if i % 4 == 0:
                    A(f"s_add_u32 m0, s{S_WDST}, {WBASE + i*1024}")
                    A("s_nop 0")
                if i == 6:
                    A(f"s_cmp_eq_u32 s{S_WAVE}, 3")
                    A("s_cbranch_scc1 L_skw0")
                A(f"buffer_load_dwordx4 v{V_WOFF+i}, s[{SRD_W}:{SRD_W+3}], 0 offen offset:{(i%4)*1024} lds")
                if i == 6:
                    self.label("L_skw0")
        nfirst = o.get("nfirst", 3)
        for n in range(min(nfirst, 8)):
            dma0(n)
        for i in range(7):
            woff(i)
            if 8 + i < nfirst:
                dma0(8 + i)
        A(f"s_add_u32 s{SRD_O}, s{S_OUT}, s{S_T0}")
        A(f"s_addc_u32 s{SRD_O+1}, s{S_OUT+1}, 0")
        A(f"s_mov_b32 s{SRD_O+2}, {XG_BYTES}")
        A(f"s_mov_b32 s{SRD_O+3}, 0x20000")
        A(f"s_and_b32 s{S_ODD}, s{S_CG}, 1")
        if o.get("visit", 3) & 1:
            self.C("warm the instruction cache: hop through the first line of this wave's loop page and come back")
            for r in (V_WRD, V_WRD2, V_XRD0, V_XRD1, V_ST, V_ST + 1, V_STO):
                A(f"v_mov_b32 v{r}, 0")
            A("s_mov_b64 vcc, -1")
            for v in range(1, 4):
                A(f"s_cmp_eq_u32 s{S_WAVE}, {v}")
                A(f"s_cbranch_scc1 L_w{v}")
            A("s_branch L_w0")
        self.label("L_backA")
        self.C("zero the accumulators not started with C=0, and the padding slots of X set 1")
        for r in range(ACC(3, 0), 256):
            A(f"v_mov_b32 v{r}, 0")
        for q in (0, 9):
            for i in range(4):
                A(f"v_accvgpr_write_b32 a{XF(1, q) + i}, 0")
        self.C("LDS read addresses")
        A(f"v_lshrrev_b32 v{E}, 5, v0")
        A(f"v_lshlrev_b32 v{E}, 4, v{E}")
        A(f"v_bfe_u32 v{E+1}, v0, 2, 3")
        A(f"v_add_u32 v{E}, v{E}, v{E+1}")
        A(f"v_mul_u32_u24 v{E}, 288, v{E}")
        A(f"v_and_b32 v{E+1}, 3, v0")
        A(f"v_lshl_add_u32 v{E}, v{E+1}, 3, v{E}")
        A(f"s_lshl_b32 s{S_T0}, s{S_ODD}, 8")
        A(f"s_sub_u32 s{S_T0}, 256, s{S_T0}")
        A(f"v_add_u32 v{V_WLANE2}, s{S_T0}, v{E}")
        A(f"s_lshl_b32 s{S_T1}, s{S_ODD}, 5")
        A(f"s_lshl_b32 s{S_T2}, s{S_CH}, 7")
        A(f"s_add_u32 s{S_T1}, s{S_T1}, s{S_T2}")
        A(f"v_add_u32 v{V_WLANE}, s{S_T1}, v{E}")
        A(f"v_add_u32 v{V_WRD}, {WBASE}, v{V_WLANE}")
        A(f"v_add_u32 v{V_WRD2}, {WBASE}, v{V_WLANE2}")
        A(f"v_bfe_u32 v{E}, v0, 3, 1")
        A(f"v_lshlrev_b32 v{E}, 14, v{E}")
        A(f"v_and_b32 v{E+1}, 7, v0")
        A(f"v_lshl_add_u32 v{E}, v{E+1}, 7, v{E}")
        A(f"v_bfe_u32 v{E+1}, v0, 1, 3")
        A(f"v_lshrrev_b32 v{E+2}, 4, v0")
        A(f"v_xor_b32 v{E+1}, v{E+1}, v{E+2}")
        A(f"v_lshl_add_u32 v{V_XRD0}, v{E+1}, 4, v{E}")
        A(f"v_xor_b32 v{V_XRD1}, 64, v{V_XRD0}")
        self.tail_addr()
        A(f"s_mul_i32 s{S_T3}, s{S_CG}, 288")
        A(f"v_lshrrev_b32 v{E}, 1, v{V_PWR}")
        A(f"v_add_u32 v{E}, s{S_T3}, v{E}")
        A(f"v_min_u32 v{E}, 1150, v{E}")
        A(f"v_add_u32 v{V_PWR}, {PARAM}, v{V_PWR}")
        if o.get("visit", 3) & 2:
            self.C("same for tail page (wave id)")
            A("s_mov_b64 vcc, -1")
            for v in range(1, self.ntailpages):
                A(f"s_cmp_eq_u32 s{S_WAVE}, {v}")
                A(f"s_cbranch_scc1 L_tp{v}")
            A("s_branch L_tp0")
        self.label("L_back")
        A("s_mov_b64 vcc, 0")
        self.stamp(2)
        mt = o.get("mtouch", 0)
        if mt:
            A(f"s_lshr_b32 s{S_T3}, {mt}, s{S_WAVE}")
            A(f"s_and_b32 s{S_T3}, s{S_T3}, 1")
            A("s_cbranch_scc0 L_nomt")
            A(f"buffer_load_dword v{V_TDST}, v{V_TOUCH}, s[{SRD_T}:{SRD_T+3}], s{S_TOFF} offen")
            self.label("L_nomt")
        self.C("rest of stage 0")
        for n in range(nfirst, 15):
            dma0(n)
        self.C("w stage 1 DMA")
        A(f"s_mov_b32 s{S_WSOFF}, {WSTEP}")
        for i in range(7):
            if i % 4 == 0:
                A(f"s_add_u32 m0, s{S_WDST}, {WBASE + WBUF + i*1024}")
                A("s_nop 0")
            if i == 6:
                A(f"s_cmp_eq_u32 s{S_WAVE}, 3")
                A("s_cbranch_scc1 L_skw1")
            A(f"buffer_load_dwordx4 v{V_WOFF+i}, s[{SRD_W}:{SRD_W+3}], s{S_WSOFF} offen offset:{(i%4)*1024} lds")
        self.label("L_skw1")
        self.C("BN parameter loads: channel = min(cg*144 + tid, 575)")
        A(f"global_load_ushort v{V_RAW}, v{E}, s[{S_MEAN}:{S_MEAN+1}]")
        A(f"global_load_ushort v{V_RAW+1}, v{E}, s[{S_VAR}:{S_VAR+1}]")
        A(f"global_load_ushort v{V_RAW+2}, v{E}, s[{S_G}:{S_G+1}]")
        A(f"global_load_ushort v{V_RAW+3}, v{E}, s[{S_B}:{S_B+1}]")
        lt = o.get("ltouch", 0)
        self.after_w1 = [4 + ((lt >> v) & 1) for v in range(4)]
        if lt:
            A(f"s_lshr_b32 s{S_T3}, {lt}, s{S_WAVE}")
            A(f"s_and_b32 s{S_T3}, s{S_T3}, 1")
            A("s_cbranch_scc0 L_nolt")
            A(f"buffer_load_dword v{V_TDST}, v{V_TOUCH}, s[{SRD_T}:{SRD_T+3}], s{S_TOFF} offen")
            self.label("L_nolt")
        self.C("touch() pre-increments: waves 2,3 -> index 2 (peeled step), waves 0,1 -> index 3 (step 1)")
        A(f"s_sub_u32 s{S_T3}, 2, s{S_PH}")
        A(f"s_mul_i32 s{S_TOFF}, s{S_TSTEP}, s{S_T3}")
        self.C("state for the main loop")
        A(f"s_mov_b32 s{S_XSOFF}, 128")
        A(f"s_mov_b32 s{S_XM0}, {XBUF}")
        A(f"s_mov_b32 s{S_WSOFF}, {2*WSTEP}")
        A(f"s_mov_b32 s{S_WDST}, {WBASE+2*WBUF}")
        A(f"s_mov_b32 s{S_WCUR}, {WBASE}")
        A(f"s_mov_b32 s{S_CNT}, 0")
        A(f"s_mov_b32 s{S_L}, {LOG2E:#x}")
        A(f"s_mov_b32 s{S_L+1}, {LOG2E:#x}")
        if o.get("stamps"):
            A(f"s_mul_i32 s{S_T0}, s{S_WAVE}, 96")
            A(f"s_add_u32 s{S_T0}, s{S_T0}, {STMP}")
            A(f"v_mov_b32 v{V_STMP1}, s{S_T0}")
        self.C("dispatch on wave id")
        for v in range(1, 4):
            A(f"s_cmp_eq_u32 s{S_WAVE}, {v}")
            A(f"s_cbranch_scc1 L_w{v}")
        A("s_branch L_w0")
        self.label("L_end0")
        A("s_endpgm")

    def tail_addr(self):
        A = self.A
        E = V_E
        self.C("tail addresses")
        A(f"v_mov_b32 v{V_WT01}, v{V_WRD}")
        A(f"v_add_u32 v{V_WT2}, {2*WBUF}, v{V_WRD}")
        A(f"v_mov_b32 v{V_WO01}, v{V_WRD2}")
        A(f"v_add_u32 v{V_WO2}, {2*WBUF}, v{V_WRD2}")
        A(f"s_lshl_b32 s{S_T2}, s{S_PH}, 13")
        A(f"v_mov_b32 v{E}, {ZERO}")
        A(f"v_mov_b32 v{E+2}, 0")
        A(f"v_mov_b32 v{E+3}, 0")
        A(f"ds_write_b64 v{E}, v[{E+2}:{E+3}]")
        A(f"ds_write_b64 v{E}, v[{E+2}:{E+3}] offset:8")
        A(f"s_cmp_eq_u32 s{S_PH}, 1")
        A(f"s_cselect_b64 s[{S_PC}:{S_PC+1}], -1, 0")
        for h in range(2):
            A(f"v_add_u32 v{V_XT+h}, s{S_T2}, v{V_XRD0+h}")
            A(f"v_add_u32 v{E+1}, {7*1024}, v{V_XRD0+h}")
            A(f"v_cndmask_b32 v{V_XT0+h}, v{E}, v{E+1}, s[{S_PC}:{S_PC+1}]")
            A(f"v_add_u32 v{E+1}, {8*1024}, v{V_XRD0+h}")
            A(f"v_cndmask_b32 v{V_XT9+h}, v{E+1}, v{E}, s[{S_PC}:{S_PC+1}]")
        A(f"v_lshrrev_b32 v{E}, 4, v0")
        A(f"v_lshlrev_b32 v{E}, 4, v{E}")
        A(f"s_lshl_b32 s{S_T2}, s{S_T1}, 1")
        A(f"s_add_u32 s{S_T2}, s{S_T2}, {PARAM}")
        A(f"v_add_u32 v{V_PRF}, s{S_T2}, v{E}")
        A(f"s_lshl_b32 s{S_T2}, s{S_T0}, 1")
        A(f"s_add_u32 s{S_T2}, s{S_T2}, {PARAM}")
        A(f"v_add_u32 v{V_PRO}, s{S_T2}, v{E}")
        A(f"s_lshl_b32 s{S_T2}, s{S_WAVE}, 13")
        A(f"s_add_u32 s{S_T2}, s{S_T2}, {XBUF}")
        A(f"v_and_b32 v{E}, 15, v0")
        A(f"v_bfe_u32 v{E+1}, v0, 4, 1")
        A(f"v_lshrrev_b32 v{E+2}, 5, v0")
        A(f"v_bfe_u32 v{E+3}, v0, 1, 2")
        A(f"v_xor_b32 v{E+3}, v{E+3}, v{E+2}")
        A(f"v_lshlrev_b32 v{E+4}, 6, v{E}")
        A(f"v_lshl_add_u32 v{E+4}, v{E+3}, 4, v{E+4}")
        A(f"v_lshl_add_u32 v{E+4}, v{E+1}, 3, v{E+4}")
        A(f"v_add_u32 v{V_SW}, s{S_T2}, v{E+4}")
        A(f"v_xor_b32 v{V_SW+1}, 32, v{V_SW}")
        A(f"v_bfe_u32 v{E+3}, v0, 3, 2")
        A(f"v_xor_b32 v{E+3}, v{E+3}, v0")
        A(f"v_lshlrev_b32 v{E+3}, 4, v{E+3}")
        A(f"v_add_u32 v{V_SR}, s{S_T2}, v{E+3}")
        A(f"s_lshl_b32 s{S_T2}, s{S_WAVE}, 11")
        A(f"s_add_u32 s{S_T2}, s{S_T2}, {OSTG}")
        A(f"v_lshlrev_b32 v{E+4}, 5, v{E}")
        A(f"v_lshl_add_u32 v{E+4}, v{E+2}, 4, v{E+4}")
        A(f"v_lshl_add_u32 v{E+4}, v{E+1}, 3, v{E+4}")
        A(f"v_add_u32 v{V_SWO}, s{S_T2}, v{E+4}")
        A(f"v_lshlrev_b32 v{E+4}, 4, v0")
        A(f"v_add_u32 v{V_SRO}, s{S_T2}, v{E+4}")
        A(f"s_mul_i32 s{S_T2}, s{S_PH}, {8*1152}")
        A(f"s_mul_i32 s{S_T3}, s{S_CG}, 288")
        A(f"s_add_u32 s{S_T2}, s{S_T2}, s{S_T3}")
        A(f"s_add_u32 s{S_T3}, s{S_T2}, s{S_T1}")
        A(f"v_lshrrev_b32 v{E}, 2, v0")
        A(f"v_mul_u32_u24 v{E}, 18432, v{E}")
        A(f"v_and_b32 v{E+1}, 3, v0")
        A(f"v_lshl_add_u32 v{E}, v{E+1}, 4, v{E}")
        A(f"v_add_u32 v{V_ST}, s{S_T3}, v{E}")
        A(f"v_add_u32 v{V_ST+1}, {4*1152}, v{V_ST}")
        A(f"s_mul_i32 s{S_T3}, s{S_CH}, {4*1152}")
        A(f"s_add_u32 s{S_T3}, s{S_T3}, s{S_T2}")
        A(f"s_add_u32 s{S_T3}, s{S_T3}, s{S_T0}")
        A(f"v_bfe_u32 v{E}, v0, 1, 4")
        A(f"v_mul_u32_u24 v{E}, 18432, v{E}")
        A(f"v_mul_u32_u24 v{E+1}, 1152, v{E+2}")
        A(f"v_add3_u32 v{E}, v{E}, v{E+1}, s{S_T3}")
        A(f"v_and_b32 v{E+1}, 1, v0")
        A(f"v_lshl_add_u32 v{V_STO}, v{E+1}, 4, v{E}")

    def params_ops(self):
        P, T = V_RAW, V_E
        L = []
        for i in range(4):
            L.append(f"v_lshlrev_b32 v{P+i}, 16, v{P+i}")
        L += [f"v_add_f32 v{T}, 0x3727c5ac, v{P+1}",
              f"v_cvt_pk_bf16_f32 v{T}, v{T}, v{T}",
              f"v_lshlrev_b32 v{T}, 16, v{T}",
              f"v_sqrt_f32 v{T}, v{T}",
              "s_nop 0",
              f"v_cvt_pk_bf16_f32 v{T}, v{T}, v{T}",
              f"v_lshlrev_b32 v{T}, 16, v{T}",
              f"v_rcp_f32 v{T}, v{T}",
              "s_nop 0",
              f"v_cvt_pk_bf16_f32 v{T}, v{T}, v{T}",
              f"v_lshlrev_b32 v{T}, 16, v{T}",
              f"v_mul_f32 v{T}, v{P+2}, v{T}",
              f"v_cvt_pk_bf16_f32 v{T}, v{T}, v{T}",
              f"v_lshlrev_b32 v{T}, 16, v{T}",
              f"v_fma_f32 v{T+1}, -v{P}, v{T}, v{P+3}",
              f"v_mul_f32 v{T}, s{S_L}, v{T}",
              f"v_mul_f32 v{T+1}, s{S_L}, v{T+1}",
              f"ds_write_b32 v{V_PWR}, v{T}",
              f"ds_write_b32 v{V_PWR}, v{T+1} offset:1024"]
        return L

    def wave_main(self, wv):
        A = self.A
        o = self.o
        nw = 7 if wv < 3 else 6
        self.raw(".p2align 12")
        self.label(f"L_w{wv}")
        A("s_cbranch_vccnz L_backA")
        A(f"s_waitcnt vmcnt({nw + self.after_w1[wv]})")
        A("s_barrier")
        self.stamp(3)
        for i in self.w_reads(0) + self.x_reads(wv, 0):
            A(i)
        first = self.x_dma(wv, 0) + self.x_dma(wv, 1) + self.w_dma(wv)
        fg = o.get("fgap", 4)
        first_late = [(wv + idx * fg, g) for idx, g in enumerate(first)]
        ev, od = self.setups()
        self.step(wv, 0, ev, 0, 3, late_override=first_late, vm_override=self.after_w1[wv] + 8 + nw)
        A(f"s_branch L_mid{wv}")
        self.label(f"L_loop{wv}")
        self.step(wv, 0, ev, 0, 3)
        self.label(f"L_mid{wv}")
        self.step(wv, 0, ev, 3, 5)
        A(f"s_cbranch_scc1 L_tail")
        self.step(wv, 1, od)
        A(f"s_branch L_loop{wv}")

    def setups(self):
        ev = [[f"s_mov_b32 s{S_WDST}, s{S_WCUR}", f"s_add_u32 s{S_WCUR}, s{S_WCUR}, {WBUF}"],
              [f"s_cmp_eq_u32 s{S_WCUR}, {WEND}", f"s_cselect_b32 s{S_WCUR}, {WBASE}, s{S_WCUR}"],
              [f"v_add_u32 v{V_WRD}, s{S_WCUR}, v{V_WLANE}", f"s_add_u32 s{S_WSOFF}, s{S_WSOFF}, {WSTEP}"],
              [f"v_add_u32 v{V_WRD2}, s{S_WCUR}, v{V_WLANE2}"],
              [f"s_add_u32 s{S_XSOFF}, s{S_XSOFF}, 128", f"v_xor_b32 v{V_XRD0}, {XBUF}, v{V_XRD0}"],
              [f"v_xor_b32 v{V_XRD1}, {XBUF}, v{V_XRD1}", f"s_xor_b32 s{S_XM0}, s{S_XM0}, {XBUF}"]]
        return ev, ev[:4]

    def step(self, wv, odd, setup, lo=0, hi=5, late_override=None, vm_override=None):
        A = self.A
        o = self.o
        nw = 7 if wv < 3 else 6
        win = nw + 4
        groups = self.mfma_groups(wv, odd)
        n = [len(g) for g in groups]
        start = [sum(n[:i]) for i in range(6)]
        total = sum(n)
        fill = [[] for _ in range(total)]
        pre = [[] for _ in range(total)]

        def spread(items, lo_, hi_):
            m = len(items)
            for idx, it in enumerate(items):
                fill[lo_ + (idx * (hi_ - lo_)) // m].append(it)

        xr1 = self.x_reads(wv, 1) if not odd else []
        spread(self.w_reads(1) + xr1[0:3], start[0], start[0] + 16)
        spread(self.w_reads(2) + xr1[3:6], start[1], start[1] + 16)
        spread(self.w_reads(3) + self.w_reads(4) + xr1[6:9], start[2], start[2] + 16)
        for gi in range(3):
            pre[start[gi]].append("s_waitcnt lgkmcnt(0)")
        peeled = late_override is not None
        tch = 1 if (o.get("touch", 1) and wv < 2) else 0
        if peeled:
            vm = vm_override
            if o.get("touch", 1) and wv >= 2 and o.get("p2touch", 1):
                fill[o.get("p2pos", 61)].extend(self.touch())
                vm += 1
        elif odd:
            vm = nw + tch
            if tch:
                fill[o.get("tpos", 8) + wv * o.get("tsep", 0)].extend(self.touch())
        else:
            vm = nw + 8 + tch
        if o.get("stamps"):
            pre[start[0]].append(f"s_memtime s[{S_ST}:{S_ST+1}]")
            fill[start[1]].extend([f"v_mov_b32 v{V_STMP0}, s{S_ST}", f"ds_write_b32 v{V_STMP1}, v{V_STMP0}", f"v_add_u32 v{V_STMP1}, 4, v{V_STMP1}"])
        for idx, g in enumerate(setup):
            fill[start[2] + 16 + idx].extend(g)
        fill[start[3] - 1].append(f"s_waitcnt vmcnt({vm}) lgkmcnt(0)")
        pre[start[3]].append("s_barrier")
        spread(self.w_reads(0) + (self.x_reads(wv, 0) if odd else []), start[3], start[3] + 22)
        wg = o.get("wgap", 4)
        for idx, g in enumerate(self.w_dma(wv)):
            pos = start[3] + 1 + (wv * wg) // 4 + idx * wg
            assert pos < total - 2
            fill[pos].extend(g)
        if late_override is None:
            xg = o.get("xgap", 6)
            late = [] if odd else [(o.get("xpos", 2) + (wv * xg) // 4 + idx * xg, g) for idx, g in enumerate(self.x_dma(wv, 0) + self.x_dma(wv, 1))]
        else:
            late = late_override
        for pos, g in late:
            assert pos < start[2] + 16, pos
            fill[pos].extend(g)
        if not odd:
            fill[total - 2].extend([f"s_add_u32 s{S_CNT}, s{S_CNT}, 1", f"s_cmp_eq_u32 s{S_CNT}, 8"])
        flat = [m for g in groups for m in g]
        if peeled:
            seen = set()
            for i, m in enumerate(flat):
                c = m.split()[1]
                if c not in seen:
                    seen.add(c)
                    flat[i] = m[:m.rindex(",")] + ", 0"
        for i in range(start[lo], start[hi]):
            for x in pre[i]: A(x)
            A(flat[i])
            for x in fill[i]: A(x)

    def tail(self):
        o = self.o
        out = []
        st = {"nds": 0}

        def E_(s):
            out.append(s)
            if s.startswith("ds_"):
                st["nds"] += 1
                return st["nds"]
            return None

        def wait_ds(seq):
            n = st["nds"] - seq
            if st.get("waited", 0) >= seq:
                return
            st["waited"] = seq
            out.append(f"s_waitcnt lgkmcnt({min(n, 15)})")

        XS = {15: 1, 16: 0, 17: 2}

        def wread(stage, jj, k, dst):
            slot = stage - 15
            r = []
            for e in range(2):
                off = k * 9216 + e * 2304 + (jj * 32 if jj < 4 else 0)
                if slot < 2:
                    va = V_WT01 if jj < 4 else V_WO01
                    off += slot * WBUF
                else:
                    va = V_WT2 if jj < 4 else V_WO2
                r.append(f"ds_read_b64_tr_b16 a[{dst+2*e}:{dst+2*e+1}], v{va} offset:{off}")
            return r

        def xreads(stage):
            h = stage - 16
            r = []
            for q in range(10):
                b = XF(XS[stage], q)
                if q == 0:
                    r.append(f"ds_read_b128 a[{b}:{b+3}], v{V_XT0+h}")
                elif q == 9:
                    r.append(f"ds_read_b128 a[{b}:{b+3}], v{V_XT9+h}")
                else:
                    r.append(f"ds_read_b128 a[{b}:{b+3}], v{V_XT+h} offset:{(q-1)*1024}")
            return r

        npre = o.get("npre", 3)
        phases = []
        for jj in range(npre):
            phases.append((jj, [15], {(15, k): WFb(jj, k) for k in range(3)}, False))
        bufs = [TA, TB]
        for jj in range(5):
            stages = [16, 17] if jj < npre else [15, 16, 17]
            base = bufs[jj % 2]
            regs = {}
            for i, (sg, k) in enumerate([(sg, k) for sg in stages for k in range(3)]):
                regs[(sg, k)] = base + 4 * i
            phases.append((jj, stages, regs, True))

        def phase_mfmas(ph_, ch):
            jj, stages, regs, final = ph_
            res = []
            sl = range(8) if jj < 4 else range(4)
            for s in sl:
                seq = [(sg, k) for sg in stages for k in range(3)]
                if s % 2: seq = seq[::-1]
                for i, (sg, k) in enumerate(seq):
                    q = s + k + (4 * ch if jj == 4 else 0)
                    res.append((mfma(ACC(jj, s), regs[(sg, k)], XF(XS[sg], q)), (jj, s) if (final and i == len(seq) - 1) else None))
            return res

        def tile_plain(jj, s, tmp, dst):
            acc = ACC(jj, s)
            par = V_PAR + 8 * jj
            y, e = tmp, tmp + 4
            ops = []
            for i in range(4): ops.append((1, f"v_fma_f32 v{y+i}, v{acc+i}, v{par+i}, v{par+4+i}"))
            for i in range(4): ops.append((2, f"v_exp_f32 v{e+i}, -v{y+i}"))
            for i in range(4): ops.append((1, f"v_fma_f32 v{e+i}, v{e+i}, s{S_L}, s{S_L}"))
            for i in range(4): ops.append((2, f"v_rcp_f32 v{e+i}, v{e+i}"))
            for i in range(4): ops.append((1, f"v_mul_f32 v{y+i}, v{y+i}, v{e+i}"))
            ops.append((1, f"v_cvt_pk_bf16_f32 v{dst}, v{y}, v{y+1}"))
            ops.append((1, f"v_cvt_pk_bf16_f32 v{dst+1}, v{y+2}, v{y+3}"))
            return ops

        def tile_pk(jj, s, tmp, dst):
            acc = ACC(jj, s)
            par = V_PAR + 8 * jj
            y, e = tmp, tmp + 4
            ins = [f"v_pk_fma_f32 v[{y}:{y+1}], v[{acc}:{acc+1}], v[{par}:{par+1}], v[{par+4}:{par+5}]",
                   f"v_pk_fma_f32 v[{y+2}:{y+3}], v[{acc+2}:{acc+3}], v[{par+2}:{par+3}], v[{par+6}:{par+7}]"]
            ins += [f"v_exp_f32 v{e+i}, -v{y+i}" for i in range(4)]
            ins += [f"v_pk_fma_f32 v[{e}:{e+1}], v[{e}:{e+1}], s[{S_L}:{S_L+1}], s[{S_L}:{S_L+1}]",
                    f"v_pk_fma_f32 v[{e+2}:{e+3}], v[{e+2}:{e+3}], s[{S_L}:{S_L+1}], s[{S_L}:{S_L+1}]"]
            ins += [f"v_rcp_f32 v{e+i}, v{e+i}" for i in range(4)]
            ins += [f"v_pk_mul_f32 v[{y}:{y+1}], v[{y}:{y+1}], v[{e}:{e+1}]",
                    f"v_pk_mul_f32 v[{y+2}:{y+3}], v[{y+2}:{y+3}], v[{e+2}:{e+3}]",
                    f"v_cvt_pk_bf16_f32 v{dst}, v{y}, v{y+1}",
                    f"v_cvt_pk_bf16_f32 v{dst+1}, v{y+2}, v{y+3}"]
            return ins

        def stage_write(jj, s, dst):
            if jj < 4:
                return f"ds_write_b64 v{V_SW + (jj & 1)}, v[{dst}:{dst+1}] offset:{s*1024}"
            return f"ds_write_b64 v{V_SWO}, v[{dst}:{dst+1}] offset:{s*512}"

        done = set()
        pending = []

        def after_write(jj, s):
            done.add((jj, s))
            if jj < 4:
                if (jj ^ 1, s) in done:
                    r = ACC(jj, s)
                    seq = E_(f"ds_read_b128 v[{r}:{r+3}], v{V_SR} offset:{s*1024}")
                    fl = self.stA if jj < 2 else self.stB
                    pending.append([seq, f"buffer_store_dwordx4 v[{r}:{r+3}], v{V_ST + (s >> 2)}, s[{SRD_O}:{SRD_O+3}], 0 offen offset:{(s&3)*1152 + (jj>>1)*64}{fl}", 0])
            elif (4, s ^ 1) in done:
                r = ACC(4, s)
                seq = E_(f"ds_read_b128 v[{r}:{r+3}], v{V_SRO} offset:{(s>>1)*1024}")
                pending.append([seq, f"buffer_store_dwordx4 v[{r}:{r+3}], v{V_STO}, s[{SRD_O}:{SRD_O+3}], 0 offen offset:{(s>>1)*2*1152}", 0])

        def flush_pending(min_age):
            while pending and pending[0][2] >= min_age:
                seq, ins, _ = pending.pop(0)
                wait_ds(seq)
                E_(ins)

        vs = {"queue": [], "cur": None, "ops": [], "n": 0}
        ready = {}
        params_seq = [None]

        def valu_fill(cap):
            while cap > 0:
                if vs["cur"] is None:
                    if not vs["queue"]:
                        return
                    t = vs["queue"][0]
                    if len(out) - ready[t] < 9:
                        return
                    vs["queue"].pop(0)
                    vs["cur"] = t
                    k = vs["n"] % 2
                    vs["n"] += 1
                    vs["dst"] = V_E + 16 + 2 * k
                    vs["ops"] = tile_plain(t[0], t[1], V_E + 8 * k, vs["dst"])
                    wait_ds(params_seq[0])
                w, ins = vs["ops"][0]
                if w > cap:
                    return
                vs["ops"].pop(0)
                E_(ins)
                cap -= w
                if not vs["ops"]:
                    t = vs["cur"]
                    E_(stage_write(t[0], t[1], vs["dst"]))
                    after_write(*t)
                    vs["cur"] = None

        def run_phase(idx, ch, aux, need_seq):
            ms = phase_mfmas(phases[idx], ch)
            n = len(ms)
            span = max(1, n - 8)
            place = [[] for _ in range(n)]
            for i, a in enumerate(aux):
                place[(i * span) // len(aux)].append(a)
            last = None
            if need_seq is not None:
                wait_ds(need_seq)
            for i, (m, fin) in enumerate(ms):
                E_(m)
                if fin is not None:
                    ready[fin] = len(out)
                    vs["queue"].append(fin)
                cap = 2
                for a in place[i]:
                    sq = E_(a)
                    if sq is not None: last = sq
                    if a.startswith("v_"): cap -= 2 if ("sqrt" in a or "rcp" in a) else 1
                for p in pending: p[2] += 1
                flush_pending(6)
                valu_fill(cap)
            return last

        def wset(idx):
            jj, stages, regs, _ = phases[idx]
            r = []
            for (sg, k), reg in regs.items():
                r += wread(sg, jj, k, reg)
            return r

        nph = len(phases)
        assert npre >= 2
        pr = []
        for jj in range(4):
            pr.append(f"ds_read_b128 v[{V_PAR+8*jj}:{V_PAR+8*jj+3}], v{V_PRF} offset:{64*jj}")
            pr.append(f"ds_read_b128 v[{V_PAR+8*jj+4}:{V_PAR+8*jj+7}], v{V_PRF} offset:{64*jj+1024}")
        pr.append(f"ds_read_b128 v[{V_PAR+32}:{V_PAR+35}], v{V_PRO}")
        pr.append(f"ds_read_b128 v[{V_PAR+36}:{V_PAR+39}], v{V_PRO} offset:1024")
        out.append("s_waitcnt vmcnt(6) lgkmcnt(0)")
        out.append("s_barrier")
        xr = xreads(16) + xreads(17)
        nxp = npre - 1 if npre > 2 else 2
        need = None
        for idx in range(nph - 1):
            aux = wset(idx + 1)
            if idx < nxp:
                aux += xr[idx * 20 // nxp:(idx + 1) * 20 // nxp]
            if idx == npre - 1:
                out.append("s_waitcnt vmcnt(0) lgkmcnt(0)")
                out.append("s_barrier")
                st["waited"] = st["nds"]
                aux += pr
            if idx == 0:
                po = self.params_ops()
                rest = aux
                aux = []
                while po or rest:
                    if rest: aux.append(rest.pop(0))
                    for _ in range(2):
                        if po: aux.append(po.pop(0))
            need = run_phase(idx, 0, aux, need)
            if idx == npre - 1:
                params_seq[0] = need
        saved = (list(vs["queue"]), vs["cur"], list(vs["ops"]), vs["n"], vs.get("dst"), set(done), [list(p) for p in pending], dict(ready), dict(st))
        out.append(f"s_cmp_eq_u32 s{S_CH}, 1")
        out.append("s_cbranch_scc1 L_odd1")
        mark = len(out)
        run_phase(nph - 1, 0, [], need)
        out.append("s_branch L_oddj")
        len0 = len(out) - mark
        out.append("L_odd1:")
        shift = len(out) - mark
        vs["queue"], vs["cur"], vs["ops"], vs["n"], vs["dst"] = list(saved[0]), saved[1], list(saved[2]), saved[3], saved[4]
        done.clear(); done.update(saved[5])
        pending[:] = [list(p) for p in saved[6]]
        ready.clear(); ready.update({k: v + shift for k, v in saved[7].items()})
        st.clear(); st.update(saved[8])
        run_phase(nph - 1, 1, [], need)
        out.append("L_oddj:")
        if o.get("stamps"):
            out.append(f"s_memtime s[{S_TS+10}:{S_TS+11}]")
        if vs["cur"] is not None:
            ops = vs["ops"]
            for i, (w, ins) in enumerate(ops):
                E_(ins)
            t = vs["cur"]
            E_(stage_write(t[0], t[1], vs["dst"]))
            after_write(*t)
            vs["cur"] = None
        rem = list(vs["queue"])
        self.nhidden = 36 - len(rem)
        order = []
        remset = set(rem)
        for t in rem:
            if t not in remset: continue
            remset.discard(t)
            partner = (t[0] ^ 1, t[1]) if t[0] < 4 else (4, t[1] ^ 1)
            order.append(t)
            if partner in remset:
                remset.discard(partner)
                order.append(partner)
        out.append("s_nop 7")
        k = 0
        i = 0
        while i < len(order):
            grp = order[i:i + 2]
            i += 2
            d = V_E + 16
            lists = [tile_pk(t[0], t[1], V_E + 8 * n_, d + 2 * n_) for n_, t in enumerate(grp)]
            if len(lists) == 1:
                a = lists[0]
                for j, x in enumerate(a):
                    E_(x)
                    if j in (5, 11): E_("s_nop 0")
            else:
                for j, (x, y) in enumerate(zip(*lists)):
                    E_(x); E_(y)
                    if j == 7:
                        for p in pending: p[2] += 100
                        flush_pending(6)
            for n_, t in enumerate(grp):
                E_(stage_write(t[0], t[1], d + 2 * n_))
                after_write(*t)
        for p in pending: p[2] += 100
        flush_pending(0)
        return out

    def emit_tail(self, out):
        A = self.A
        self.raw(".p2align 12")
        page = 0
        self.label("L_tail")
        self.label("L_tp0")
        A("s_cbranch_vccnz L_back")
        self.stamp(4)
        size = 4 + (16 if self.o.get("stamps") else 0)
        for ins in out:
            if ins.endswith(":"):
                self.label(ins[:-1]); continue
            if size >= 4096 * (page + 1):
                page += 1
                self.label(f"L_tp{page}")
                A("s_cbranch_vccnz L_back")
                size += 4
            A(ins)
            size += ins_size(ins)
        return page + 1

    def finish(self):
        A = self.A
        o = self.o
        self.stamp(6)
        if o.get("stamps"):
            A("s_waitcnt vmcnt(0)")
            self.stamp(7)
            A(f"s_memrealtime s[{S_TS+28}:{S_TS+29}]")
            A("s_waitcnt lgkmcnt(0)")
            A(f"s_lshl_b32 s{S_T0}, s2, 2")
            A(f"s_add_u32 s{S_T0}, s{S_T0}, s{S_WAVE}")
            A(f"s_lshl_b32 s{S_T0}, s{S_T0}, 8")
            A(f"v_mov_b32 v1, s{S_T0}")
            A(f"s_mul_i32 s{S_T1}, s{S_WAVE}, 96")
            A(f"s_add_u32 s{S_T1}, s{S_T1}, {STMP}")
            A(f"v_and_b32 v3, 31, v0")
            A(f"v_lshlrev_b32 v3, 2, v3")
            A(f"v_add_u32 v4, s{S_T1}, v3")
            A(f"ds_read_b32 v4, v4")
            A(f"v_add_u32 v3, v3, v1")
            A("s_waitcnt lgkmcnt(0)")
            A(f"global_store_dword v3, v4, s[{S_WS}:{S_WS+1}] offset:128")
            for i in range(8):
                A(f"v_mov_b32 v2, s{S_TS+2*i}")
                A(f"global_store_dword v1, v2, s[{S_WS}:{S_WS+1}] offset:{4*i}")
            for j, r in enumerate((30, 28, 26, 24)):
                A(f"v_mov_b32 v2, s{S_TS+r}")
                A(f"global_store_dword v1, v2, s[{S_WS}:{S_WS+1}] offset:{32+4*j}")
        A("s_endpgm")
        self.label("L_code_end")

    def emit(self):
        tail = self.tail()
        save = self.L
        self.L = []
        self.ntailpages = self.emit_tail(tail)
        self.L = save
        assert self.ntailpages <= 4, self.ntailpages
        out = [HEADER.rstrip("\n")]
        out.append(f"; @launch grid=(256,1,1) block=(256,1,1) lds={LDS_BYTES + (512 if self.o.get('stamps') else 0)}")
        out.append('.amdgcn_target "amdgcn-amd-amdhsa--gfx950"')
        out.append(".text")
        out.append(f".globl {NAME}")
        out.append(".p2align 12")
        out.append(".p2align 8")
        out.append(f".type {NAME},@function")
        out.append(f"{NAME}:")
        self.prologue()
        for wv in range(4):
            self.wave_main(wv)
        self.emit_tail(tail)
        self.finish()
        out += self.L
        out.append('.section .rodata,"a"')
        out.append(".p2align 6")
        out.append(f".amdhsa_kernel {NAME}")
        out.append("  .amdhsa_next_free_vgpr 512")
        out.append("  .amdhsa_next_free_sgpr 96")
        out.append("  .amdhsa_accum_offset 256")
        out.append("  .amdhsa_group_segment_fixed_size 0")
        out.append("  .amdhsa_kernarg_size 72")
        out.append("  .amdhsa_user_sgpr_count 2")
        out.append("  .amdhsa_user_sgpr_kernarg_segment_ptr 1")
        out.append("  .amdhsa_system_sgpr_workgroup_id_x 1")
        out.append("  .amdhsa_float_denorm_mode_32 3")
        out.append(".end_amdhsa_kernel")
        return "\n".join(out) + "\n"


def ins_size(ins):
    op = ins.split()[0]
    if op.startswith(("v_mfma", "ds_", "buffer_", "global_", "v_pk_", "v_fma_", "v_cvt_pk", "s_memtime", "s_memrealtime")):
        return 8
    if op == "v_exp_f32":
        return 8 if "-v" in ins else 4
    if op in ("v_add_f32",) and "0x" in ins:
        return 8
    if op.startswith(("s_waitcnt", "s_barrier", "s_nop", "s_cbranch", "s_branch", "s_cmp", "v_rcp", "v_sqrt", "v_mul_f32", "v_lshlrev_b32")):
        return 4
    raise ValueError(ins)


if __name__ == "__main__":
    opts = {}
    path = sys.argv[1]
    for a in sys.argv[2:]:
        k, _, v = a.partition("=")
        opts[k] = int(v) if v else 1
    g = Gen(opts)
    open(path, "w").write(g.emit())
    print(path, "tail pages", g.ntailpages, "hidden tiles", g.nhidden)
```

```python
import sys

NAME = "standalone__batchnorm__sampling_kernel"

HEADER = """; Kernarg layout for this problem (72 bytes, ptrs only, base s[0:1]):
"""

W_BYTES = 3 * 576 * 576 * 2
XG_BYTES = 16 * 18432
XBUF = 32768
WBASE = 65536
WBUF = 27648
WEND = WBASE + 3 * WBUF
PARAM = WEND
ZERO = PARAM + 2048
OSTG = ZERO + 64
STMP = OSTG + 8192
LDS_BYTES = STMP
WSTEP = 32 * 1152
ACC0 = 112
LOG2E = 0x3fb8aa3b

S_X, S_W, S_MEAN, S_VAR, S_G, S_B, S_OUT, S_DBG = 4, 6, 8, 10, 12, 14, 16, 18
SRD_X, SRD_W, SRD_O, SRD_T = 20, 24, 28, 32
S_WAVE, S_BG, S_CG, S_J = 36, 37, 38, 39
S_WSOFF, S_XSOFF, S_WCUR, S_XM0, S_CNT, S_WDST = 40, 41, 42, 43, 44, 45
S_T0, S_T1, S_T2, S_T3 = 46, 47, 48, 49
S_L = 50
S_ODD, S_PH, S_CH = 52, 53, 54
S_TOFF, S_TSTEP = 55, 56
S_PC = 58
S_WS = 60
S_ST = 62
S_TS = 64

V_WOFF = 1
V_XOFF = 8
V_WLANE, V_WRD, V_XRD0, V_XRD1, V_WLANE2, V_WRD2, V_TOUCH, V_TDST = 16, 17, 18, 19, 20, 21, 22, 23
V_RAW = 24
V_PWR = 28
V_WT01, V_WT2, V_WO01, V_WO2 = 29, 30, 31, 32
V_XT = 33
V_XT0 = 35
V_XT9 = 37
V_PRF, V_PRO = 39, 40
V_SW = 41
V_SWO, V_SR, V_SRO = 43, 44, 45
V_ST = 46
V_STO = 48
V_STMP0, V_STMP1 = 49, 50
V_PAR = 52
V_E = 92


def XF(st, q):
    b = (st * 10 + q) * 4
    return b


def WFb(jj, k):
    return 120 + (jj * 3 + k) * 4


TA, TB = 180, 216


def ACC(jj, s):
    return ACC0 + (jj * 8 + s) * 4 if jj < 4 else ACC0 + 128 + s * 4


def mfma(c, a, b):
    return f"v_mfma_f32_16x16x32_bf16 v[{c}:{c+3}], a[{a}:{a+3}], a[{b}:{b+3}], v[{c}:{c+3}]"


class Gen:
    def __init__(self, opts):
        self.L = []
        self.o = opts
        fl = {0: "", 1: " nt", 2: " sc1", 3: " sc0 sc1", 4: " nt sc1", 5: " nt sc0 sc1", 6: " sc0", 7: " nt sc0"}
        self.stO = fl[opts.get("stO", 0)]
        self.ldX = fl[opts.get("ldX", 0)]
        self.ldW = fl[opts.get("ldW", 0)]
        self.ldT = fl[opts.get("ldT", 0)]
        self.stA = fl[opts.get("stA", 0)]
        self.stB = fl[opts.get("stB", 0)]

    def A(self, s):
        self.L.append("    " + s)

    def label(self, s):
        self.L.append(s + ":")

    def C(self, s):
        self.L.append("    ; " + s)

    def raw(self, s):
        self.L.append(s)

    def stamp(self, idx):
        if self.o.get("stamps"):
            self.A(f"s_memtime s[{S_TS+2*idx}:{S_TS+2*idx+1}]")
            if idx == 3: self.A(f"s_memrealtime s[{S_TS+26}:{S_TS+27}]")
            if idx == 4: self.A(f"s_memrealtime s[{S_TS+24}:{S_TS+25}]")

    def mfma_groups(self, wv, h):
        ph, ch = wv >> 1, wv & 1
        groups = []
        for jj in range(5):
            g = []
            sl = range(8) if jj < 4 else range(4 * ch, 4 * ch + 4)
            for s in sl:
                up = (s % 2 == 0) if ph == 0 else (s % 2 == 1)
                for k in ([0, 1, 2] if up else [2, 1, 0]):
                    q = s + k
                    if (ph == 0 and q == 0) or (ph == 1 and q == 9):
                        continue
                    g.append(mfma(ACC(jj, s if jj < 4 else s - 4 * ch), WFb(jj, k), XF(h, q)))
            groups.append(g)
        return groups

    def w_reads(self, jj):
        out = []
        for k in range(3):
            for e in range(2):
                b = WFb(jj, k) + 2 * e
                if jj < 4:
                    out.append(f"ds_read_b64_tr_b16 a[{b}:{b+1}], v{V_WRD} offset:{k*9216 + e*2304 + jj*32}")
                else:
                    out.append(f"ds_read_b64_tr_b16 a[{b}:{b+1}], v{V_WRD2} offset:{k*9216 + e*2304}")
        return out

    def x_reads(self, wv, h):
        ph = wv >> 1
        out = []
        for q in (range(1, 10) if ph == 0 else range(0, 9)):
            s = 8 * ph - 1 + q
            b = XF(h, q)
            out.append(f"ds_read_b128 a[{b}:{b+3}], v{V_XRD0 + h} offset:{s*1024}")
        return out

    def w_dma(self, wv):
        n = 7 if wv < 3 else 6
        out = []
        for i in range(n):
            ins = []
            if i % 4 == 0:
                ins.append(f"s_add_u32 m0, s{S_WDST}, {wv*7168 + i*1024}")
                ins.append("s_nop 0")
            ins.append(f"buffer_load_dwordx4 v{V_WOFF+i}, s[{SRD_W}:{SRD_W+3}], s{S_WSOFF} offen offset:{(i%4)*1024}{self.ldW} lds")
            out.append(ins)
        return out

    def x_dma(self, wv, p):
        out = []
        for i in range(4):
            ins = []
            if i == 0:
                ins.append(f"s_add_u32 m0, s{S_XM0}, {p*16384 + wv*4096}")
                ins.append("s_nop 0")
            ins.append(f"buffer_load_dwordx4 v{V_XOFF+4*p+i}, s[{SRD_X}:{SRD_X+3}], s{S_XSOFF} offen offset:{i*1024}{self.ldX} lds")
            out.append(ins)
        return out

    def touch(self):
        return [f"s_add_u32 s{S_TOFF}, s{S_TOFF}, s{S_TSTEP}",
                f"buffer_load_dword v{V_TDST}, v{V_TOUCH}, s[{SRD_T}:{SRD_T+3}], s{S_TOFF} offen{self.ldT}"]

    def prologue(self):
        A = self.A
        o = self.o
        E = V_E
        A("s_cmp_ge_u32 s2, 256")
        A("s_cbranch_scc1 L_end0")
        A(f"s_load_dwordx16 s[4:19], s[0:1], 0")
        if o.get("stamps"):
            A(f"s_load_dwordx2 s[{S_WS}:{S_WS+1}], s[0:1], 64")
            A(f"s_memrealtime s[{S_TS+30}:{S_TS+31}]")
        self.stamp(0)
        A(f"v_lshrrev_b32 v{E}, 6, v0")
        A(f"v_lshlrev_b32 v{V_PWR}, 2, v0")
        A(f"v_readfirstlane_b32 s{S_WAVE}, v{E}")
        A(f"v_and_b32 v0, 63, v0")
        self.C("workgroup decode: xcd = id&7, j = id>>3, cg = j&3, bg = xcd*8 + (j>>2)")
        A(f"s_and_b32 s{S_T0}, s2, 7")
        A(f"s_lshr_b32 s{S_J}, s2, 3")
        A(f"s_and_b32 s{S_CG}, s{S_J}, 3")
        A(f"s_lshr_b32 s{S_T1}, s{S_J}, 2")
        A(f"s_lshl_b32 s{S_T0}, s{S_T0}, 3")
        A(f"s_add_u32 s{S_BG}, s{S_T0}, s{S_T1}")
        if o.get("codepf"):
            self.C("pull the kernel's own code into L2: WG j, wave v reads lines (j*4+v)*NL .. +NL-1")
            nl = o.get("codepf")
            A(f"s_getpc_b64 s[{S_PC}:{S_PC+1}]")
            self.label("L_pc")
            A(f"s_lshl_b32 s{S_T0}, s{S_J}, 2")
            A(f"s_add_u32 s{S_T0}, s{S_T0}, s{S_WAVE}")
            A(f"s_mul_i32 s{S_T0}, s{S_T0}, {nl*128}")
            A(f"v_and_b32 v{E}, {nl-1}, v0")
            A(f"v_lshlrev_b32 v{E}, 7, v{E}")
            A(f"v_add_u32 v{E}, s{S_T0}, v{E}")
            A(f"v_min_u32 v{E}, L_code_end-L_pc-4, v{E}")
            A(f"global_load_dword v{V_TDST}, v{E}, s[{S_PC}:{S_PC+1}]")
        self.C("x DMA voffsets: (8p + (l>>3))*18432 + ((l&7) ^ (4p + (l>>4)))*16 + (4v+i)*1152 - i*1024")
        A(f"v_lshrrev_b32 v{E}, 3, v0")
        A(f"v_mul_u32_u24 v{E}, 18432, v{E}")
        A(f"v_and_b32 v{E+1}, 7, v0")
        A(f"v_lshrrev_b32 v{E+2}, 4, v0")
        A(f"v_xor_b32 v{E+1}, v{E+1}, v{E+2}")
        A(f"v_lshl_add_u32 v{E}, v{E+1}, 4, v{E}")
        A(f"s_mul_i32 s{S_T0}, s{S_WAVE}, {4*1152}")
        A(f"v_add_u32 v{V_XOFF}, s{S_T0}, v{E}")
        A(f"v_xor_b32 v{E}, 64, v{V_XOFF}")
        A(f"v_add_u32 v{V_XOFF+4}, {8*18432}, v{E}")
        for i in range(1, 4):
            A(f"v_add_u32 v{V_XOFF+i}, {128*i}, v{V_XOFF}")
            A(f"v_add_u32 v{V_XOFF+4+i}, {128*i}, v{V_XOFF+4}")
        self.C("w voffset recurrence state: t = Q*3641 (Q = 448*wave + 64*i + lane), lc = 16*lane + 1024*7*wave")
        A(f"s_mul_i32 s{S_T0}, s{S_WAVE}, 448")
        A(f"v_add_u32 v{E}, s{S_T0}, v0")
        A(f"v_lshlrev_b32 v{E+1}, 4, v{E}")
        A(f"v_mul_u32_u24 v{E}, 3641, v{E}")
        A(f"s_mul_i32 s{S_T0}, s{S_BG}, {XG_BYTES}")
        A(f"s_mul_i32 s{S_T1}, s{S_CG}, 288")
        A(f"s_mov_b32 s{SRD_X+2}, {XG_BYTES}")
        A(f"s_mov_b32 s{SRD_X+3}, 0x20000")
        A(f"s_mov_b32 s{SRD_W+3}, 0x20000")
        A(f"s_sub_u32 s{SRD_W+2}, {W_BYTES}, s{S_T1}")
        A(f"s_lshl_b32 s{S_XM0}, s{S_WAVE}, 12")
        A(f"s_mul_i32 s{S_WDST}, s{S_WAVE}, 7168")
        A(f"s_movk_i32 s{S_T2}, 864")
        A(f"s_movk_i32 s{S_T3}, 4608")
        A(f"s_mov_b32 s{S_CNT}, 626688")
        A(f"s_mov_b32 m0, s{S_XM0}")

        def woff(i):
            t, lc, a = E, E + 1, E + 2
            if i:
                A(f"v_add_u32 v{t}, {64*3641}, v{t}")
            A(f"v_lshrrev_b32 v{a}, 16, v{t}")
            A(f"v_bfe_u32 v{a+1}, v{t}, 18, 1")
            A(f"v_bfe_u32 v{a+2}, v{t}, 19, 1")
            A(f"v_lshrrev_b32 v{a+3}, 21, v{t}")
            if i == 4:
                A(f"v_add_u32 v{lc}, 4096, v{lc}")
            A(f"v_sub_u32 v{a+1}, v{a+1}, v{a+2}")
            A(f"v_mad_u32_u24 v{a}, v{a}, s{S_T2}, v{lc}")
            A(f"v_mad_i32_i24 v{a}, v{a+1}, s{S_T3}, v{a}")
            A(f"v_mad_u32_u24 v{V_WOFF+i}, v{a+3}, s{S_CNT}, v{a}")

        self.C("L2 prefetch (touch) address: wave&1 == 0: w lines, 1: x lines")
        A(f"s_lshr_b32 s{S_PH}, s{S_WAVE}, 1")
        A(f"s_and_b32 s{S_CH}, s{S_WAVE}, 1")
        A("s_cbranch_scc1 L_tx")
        A(f"v_min_u32 v{E+2}, 53, v0")
        A(f"v_mul_u32_u24 v{E+3}, 3641, v{E+2}")
        A(f"v_lshrrev_b32 v{E+3}, 16, v{E+3}")
        A(f"v_mul_u32_u24 v{E+3}, {663552-18*128}, v{E+3}")
        A(f"v_lshl_add_u32 v{V_TOUCH}, v{E+2}, 7, v{E+3}")
        A(f"s_mul_i32 s{S_TOFF}, s{S_J}, {18*128}")
        A(f"v_add_u32 v{V_TOUCH}, s{S_TOFF}, v{V_TOUCH}")
        A(f"s_mov_b32 s{S_TSTEP}, {64*1152}")
        A("s_branch L_tdone")
        self.label("L_tx")
        A(f"s_lshl_b32 s{S_TOFF}, s{S_CG}, 6")
        A(f"v_add_u32 v{E+2}, s{S_TOFF}, v0")
        A(f"v_mul_u32_u24 v{V_TOUCH}, 1152, v{E+2}")
        A(f"s_movk_i32 s{S_TSTEP}, 128")
        self.label("L_tdone")
        A(f"s_mul_i32 s{S_TOFF}, s{S_TSTEP}, s{S_PH}")
        A(f"s_mov_b32 s{SRD_T+3}, 0x20000")
        A("s_waitcnt lgkmcnt(0)")
        self.stamp(1)
        A(f"s_add_u32 s{SRD_X}, s{S_X}, s{S_T0}")
        A(f"s_addc_u32 s{SRD_X+1}, s{S_X+1}, 0")
        A(f"s_cmp_eq_u32 s{S_CH}, 1")
        A(f"s_cselect_b32 s{SRD_T}, s{SRD_X}, s{S_W}")
        A(f"s_cselect_b32 s{SRD_T+1}, s{SRD_X+1}, s{S_W+1}")
        A(f"s_cselect_b32 s{SRD_T+2}, s{SRD_X+2}, s{SRD_W+2}")
        pt = o.get("ptouch", 15)
        if pt:
            if pt != 15:
                A(f"s_lshr_b32 s{S_ODD}, {pt}, s{S_WAVE}")
                A(f"s_and_b32 s{S_ODD}, s{S_ODD}, 1")
                A("s_cbranch_scc0 L_nopt")
            A(f"buffer_load_dword v{V_TDST}, v{V_TOUCH}, s[{SRD_T}:{SRD_T+3}], s{S_TOFF} offen{self.ldT}")
            self.label("L_nopt")
        A(f"s_add_u32 s{SRD_W}, s{S_W}, s{S_T1}")
        A(f"s_addc_u32 s{SRD_W+1}, s{S_W+1}, 0")
        def dma0(n):
            if n < 8:
                p, i = divmod(n, 4)
                if n == 4:
                    A(f"s_add_u32 m0, s{S_XM0}, 16384")
                    A("s_nop 0")
                A(f"buffer_load_dwordx4 v{V_XOFF+4*p+i}, s[{SRD_X}:{SRD_X+3}], 0 offen offset:{i*1024}{self.ldX} lds")
            else:
                i = n - 8
                if i % 4 == 0:
                    A(f"s_add_u32 m0, s{S_WDST}, {WBASE + i*1024}")
                    A("s_nop 0")
                if i == 6:
                    A(f"s_cmp_eq_u32 s{S_WAVE}, 3")
                    A("s_cbranch_scc1 L_skw0")
                A(f"buffer_load_dwordx4 v{V_WOFF+i}, s[{SRD_W}:{SRD_W+3}], 0 offen offset:{(i%4)*1024}{self.ldW} lds")
                if i == 6:
                    self.label("L_skw0")
        nfirst = o.get("nfirst", 3)
        for n in range(min(nfirst, 8)):
            dma0(n)
        for i in range(7):
            woff(i)
            if 8 + i < nfirst:
                dma0(8 + i)
        A(f"s_add_u32 s{SRD_O}, s{S_OUT}, s{S_T0}")
        A(f"s_addc_u32 s{SRD_O+1}, s{S_OUT+1}, 0")
        A(f"s_mov_b32 s{SRD_O+2}, {XG_BYTES}")
        A(f"s_mov_b32 s{SRD_O+3}, 0x20000")
        A(f"s_and_b32 s{S_ODD}, s{S_CG}, 1")
        if o.get("visit", 3) & 1:
            self.C("warm the instruction cache: hop through the first line of this wave's loop page and come back")
            for r in (V_WRD, V_WRD2, V_XRD0, V_XRD1, V_ST, V_ST + 1, V_STO):
                A(f"v_mov_b32 v{r}, 0")
            A("s_mov_b64 vcc, -1")
            for v in range(1, 4):
                A(f"s_cmp_eq_u32 s{S_WAVE}, {v}")
                A(f"s_cbranch_scc1 L_w{v}")
            A("s_branch L_w0")
        self.label("L_backA")
        self.C("zero the accumulators not started with C=0, and the padding slots of X set 1")
        for r in range(ACC(3, 0), 256):
            A(f"v_mov_b32 v{r}, 0")
        for q in (0, 9):
            for i in range(4):
                A(f"v_accvgpr_write_b32 a{XF(1, q) + i}, 0")
        self.C("LDS read addresses")
        A(f"v_lshrrev_b32 v{E}, 5, v0")
        A(f"v_lshlrev_b32 v{E}, 4, v{E}")
        A(f"v_bfe_u32 v{E+1}, v0, 2, 3")
        A(f"v_add_u32 v{E}, v{E}, v{E+1}")
        A(f"v_mul_u32_u24 v{E}, 288, v{E}")
        A(f"v_and_b32 v{E+1}, 3, v0")
        A(f"v_lshl_add_u32 v{E}, v{E+1}, 3, v{E}")
        A(f"s_lshl_b32 s{S_T0}, s{S_ODD}, 8")
        A(f"s_sub_u32 s{S_T0}, 256, s{S_T0}")
        A(f"v_add_u32 v{V_WLANE2}, s{S_T0}, v{E}")
        A(f"s_lshl_b32 s{S_T1}, s{S_ODD}, 5")
        A(f"s_lshl_b32 s{S_T2}, s{S_CH}, 7")
        A(f"s_add_u32 s{S_T1}, s{S_T1}, s{S_T2}")
        A(f"v_add_u32 v{V_WLANE}, s{S_T1}, v{E}")
        A(f"v_add_u32 v{V_WRD}, {WBASE}, v{V_WLANE}")
        A(f"v_add_u32 v{V_WRD2}, {WBASE}, v{V_WLANE2}")
        A(f"v_bfe_u32 v{E}, v0, 3, 1")
        A(f"v_lshlrev_b32 v{E}, 14, v{E}")
        A(f"v_and_b32 v{E+1}, 7, v0")
        A(f"v_lshl_add_u32 v{E}, v{E+1}, 7, v{E}")
        A(f"v_bfe_u32 v{E+1}, v0, 1, 3")
        A(f"v_lshrrev_b32 v{E+2}, 4, v0")
        A(f"v_xor_b32 v{E+1}, v{E+1}, v{E+2}")
        A(f"v_lshl_add_u32 v{V_XRD0}, v{E+1}, 4, v{E}")
        A(f"v_xor_b32 v{V_XRD1}, 64, v{V_XRD0}")
        self.tail_addr()
        A(f"s_mul_i32 s{S_T3}, s{S_CG}, 288")
        A(f"v_lshrrev_b32 v{E}, 1, v{V_PWR}")
        A(f"v_add_u32 v{E}, s{S_T3}, v{E}")
        A(f"v_min_u32 v{E}, 1150, v{E}")
        A(f"v_add_u32 v{V_PWR}, {PARAM}, v{V_PWR}")
        if o.get("visit", 3) & 2:
            self.C("same for tail page (wave id)")
            A("s_mov_b64 vcc, -1")
            for v in range(1, self.ntailpages):
                A(f"s_cmp_eq_u32 s{S_WAVE}, {v}")
                A(f"s_cbranch_scc1 L_tp{v}")
            A("s_branch L_tp0")
        self.label("L_back")
        A("s_mov_b64 vcc, 0")
        self.stamp(2)
        mt = o.get("mtouch", 0)
        if mt:
            A(f"s_lshr_b32 s{S_T3}, {mt}, s{S_WAVE}")
            A(f"s_and_b32 s{S_T3}, s{S_T3}, 1")
            A("s_cbranch_scc0 L_nomt")
            A(f"buffer_load_dword v{V_TDST}, v{V_TOUCH}, s[{SRD_T}:{SRD_T+3}], s{S_TOFF} offen{self.ldT}")
            self.label("L_nomt")
        self.C("rest of stage 0")
        for n in range(nfirst, 15):
            dma0(n)
        self.C("w stage 1 DMA")
        A(f"s_mov_b32 s{S_WSOFF}, {WSTEP}")
        for i in range(7):
            if i % 4 == 0:
                A(f"s_add_u32 m0, s{S_WDST}, {WBASE + WBUF + i*1024}")
                A("s_nop 0")
            if i == 6:
                A(f"s_cmp_eq_u32 s{S_WAVE}, 3")
                A("s_cbranch_scc1 L_skw1")
            A(f"buffer_load_dwordx4 v{V_WOFF+i}, s[{SRD_W}:{SRD_W+3}], s{S_WSOFF} offen offset:{(i%4)*1024}{self.ldW} lds")
        self.label("L_skw1")
        self.C("BN parameter loads: channel = min(cg*144 + tid, 575)")
        A(f"global_load_ushort v{V_RAW}, v{E}, s[{S_MEAN}:{S_MEAN+1}]")
        A(f"global_load_ushort v{V_RAW+1}, v{E}, s[{S_VAR}:{S_VAR+1}]")
        A(f"global_load_ushort v{V_RAW+2}, v{E}, s[{S_G}:{S_G+1}]")
        A(f"global_load_ushort v{V_RAW+3}, v{E}, s[{S_B}:{S_B+1}]")
        lt = o.get("ltouch", 0)
        self.after_w1 = [4 + ((lt >> v) & 1) for v in range(4)]
        if lt:
            A(f"s_lshr_b32 s{S_T3}, {lt}, s{S_WAVE}")
            A(f"s_and_b32 s{S_T3}, s{S_T3}, 1")
            A("s_cbranch_scc0 L_nolt")
            A(f"buffer_load_dword v{V_TDST}, v{V_TOUCH}, s[{SRD_T}:{SRD_T+3}], s{S_TOFF} offen{self.ldT}")
            self.label("L_nolt")
        self.C("touch() pre-increments: waves 2,3 -> index 2 (peeled step), waves 0,1 -> index 3 (step 1)")
        A(f"s_sub_u32 s{S_T3}, 2, s{S_PH}")
        A(f"s_mul_i32 s{S_TOFF}, s{S_TSTEP}, s{S_T3}")
        self.C("state for the main loop")
        A(f"s_mov_b32 s{S_XSOFF}, 128")
        A(f"s_mov_b32 s{S_XM0}, {XBUF}")
        A(f"s_mov_b32 s{S_WSOFF}, {2*WSTEP}")
        A(f"s_mov_b32 s{S_WDST}, {WBASE+2*WBUF}")
        A(f"s_mov_b32 s{S_WCUR}, {WBASE}")
        A(f"s_mov_b32 s{S_CNT}, 0")
        A(f"s_mov_b32 s{S_L}, {LOG2E:#x}")
        A(f"s_mov_b32 s{S_L+1}, {LOG2E:#x}")
        if o.get("stamps"):
            A(f"s_mul_i32 s{S_T0}, s{S_WAVE}, 96")
            A(f"s_add_u32 s{S_T0}, s{S_T0}, {STMP}")
            A(f"v_mov_b32 v{V_STMP1}, s{S_T0}")
        self.C("dispatch on wave id")
        for v in range(1, 4):
            A(f"s_cmp_eq_u32 s{S_WAVE}, {v}")
            A(f"s_cbranch_scc1 L_w{v}")
        A("s_branch L_w0")
        self.label("L_end0")
        A("s_endpgm")

    def tail_addr(self):
        A = self.A
        E = V_E
        self.C("tail addresses")
        A(f"v_mov_b32 v{V_WT01}, v{V_WRD}")
        A(f"v_add_u32 v{V_WT2}, {2*WBUF}, v{V_WRD}")
        A(f"v_mov_b32 v{V_WO01}, v{V_WRD2}")
        A(f"v_add_u32 v{V_WO2}, {2*WBUF}, v{V_WRD2}")
        A(f"s_lshl_b32 s{S_T2}, s{S_PH}, 13")
        A(f"v_mov_b32 v{E}, {ZERO}")
        A(f"v_mov_b32 v{E+2}, 0")
        A(f"v_mov_b32 v{E+3}, 0")
        A(f"ds_write_b64 v{E}, v[{E+2}:{E+3}]")
        A(f"ds_write_b64 v{E}, v[{E+2}:{E+3}] offset:8")
        A(f"s_cmp_eq_u32 s{S_PH}, 1")
        A(f"s_cselect_b64 s[{S_PC}:{S_PC+1}], -1, 0")
        for h in range(2):
            A(f"v_add_u32 v{V_XT+h}, s{S_T2}, v{V_XRD0+h}")
            A(f"v_add_u32 v{E+1}, {7*1024}, v{V_XRD0+h}")
            A(f"v_cndmask_b32 v{V_XT0+h}, v{E}, v{E+1}, s[{S_PC}:{S_PC+1}]")
            A(f"v_add_u32 v{E+1}, {8*1024}, v{V_XRD0+h}")
            A(f"v_cndmask_b32 v{V_XT9+h}, v{E+1}, v{E}, s[{S_PC}:{S_PC+1}]")
        A(f"v_lshrrev_b32 v{E}, 4, v0")
        A(f"v_lshlrev_b32 v{E}, 4, v{E}")
        A(f"s_lshl_b32 s{S_T2}, s{S_T1}, 1")
        A(f"s_add_u32 s{S_T2}, s{S_T2}, {PARAM}")
        A(f"v_add_u32 v{V_PRF}, s{S_T2}, v{E}")
        A(f"s_lshl_b32 s{S_T2}, s{S_T0}, 1")
        A(f"s_add_u32 s{S_T2}, s{S_T2}, {PARAM}")
        A(f"v_add_u32 v{V_PRO}, s{S_T2}, v{E}")
        A(f"s_lshl_b32 s{S_T2}, s{S_WAVE}, 13")
        A(f"s_add_u32 s{S_T2}, s{S_T2}, {XBUF}")
        A(f"v_and_b32 v{E}, 15, v0")
        A(f"v_bfe_u32 v{E+1}, v0, 4, 1")
        A(f"v_lshrrev_b32 v{E+2}, 5, v0")
        A(f"v_bfe_u32 v{E+3}, v0, 1, 2")
        A(f"v_xor_b32 v{E+3}, v{E+3}, v{E+2}")
        A(f"v_lshlrev_b32 v{E+4}, 6, v{E}")
        A(f"v_lshl_add_u32 v{E+4}, v{E+3}, 4, v{E+4}")
        A(f"v_lshl_add_u32 v{E+4}, v{E+1}, 3, v{E+4}")
        A(f"v_add_u32 v{V_SW}, s{S_T2}, v{E+4}")
        A(f"v_xor_b32 v{V_SW+1}, 32, v{V_SW}")
        A(f"v_bfe_u32 v{E+3}, v0, 3, 2")
        A(f"v_xor_b32 v{E+3}, v{E+3}, v0")
        A(f"v_lshlrev_b32 v{E+3}, 4, v{E+3}")
        A(f"v_add_u32 v{V_SR}, s{S_T2}, v{E+3}")
        A(f"s_lshl_b32 s{S_T2}, s{S_WAVE}, 11")
        A(f"s_add_u32 s{S_T2}, s{S_T2}, {OSTG}")
        A(f"v_lshlrev_b32 v{E+4}, 5, v{E}")
        A(f"v_lshl_add_u32 v{E+4}, v{E+2}, 4, v{E+4}")
        A(f"v_lshl_add_u32 v{E+4}, v{E+1}, 3, v{E+4}")
        A(f"v_add_u32 v{V_SWO}, s{S_T2}, v{E+4}")
        A(f"v_lshlrev_b32 v{E+4}, 4, v0")
        A(f"v_add_u32 v{V_SRO}, s{S_T2}, v{E+4}")
        A(f"s_mul_i32 s{S_T2}, s{S_PH}, {8*1152}")
        A(f"s_mul_i32 s{S_T3}, s{S_CG}, 288")
        A(f"s_add_u32 s{S_T2}, s{S_T2}, s{S_T3}")
        A(f"s_add_u32 s{S_T3}, s{S_T2}, s{S_T1}")
        A(f"v_lshrrev_b32 v{E}, 2, v0")
        A(f"v_mul_u32_u24 v{E}, 18432, v{E}")
        A(f"v_and_b32 v{E+1}, 3, v0")
        A(f"v_lshl_add_u32 v{E}, v{E+1}, 4, v{E}")
        A(f"v_add_u32 v{V_ST}, s{S_T3}, v{E}")
        A(f"v_add_u32 v{V_ST+1}, {4*1152}, v{V_ST}")
        A(f"s_mul_i32 s{S_T3}, s{S_CH}, {4*1152}")
        A(f"s_add_u32 s{S_T3}, s{S_T3}, s{S_T2}")
        A(f"s_add_u32 s{S_T3}, s{S_T3}, s{S_T0}")
        A(f"v_bfe_u32 v{E}, v0, 1, 4")
        A(f"v_mul_u32_u24 v{E}, 18432, v{E}")
        A(f"v_mul_u32_u24 v{E+1}, 1152, v{E+2}")
        A(f"v_add3_u32 v{E}, v{E}, v{E+1}, s{S_T3}")
        A(f"v_and_b32 v{E+1}, 1, v0")
        A(f"v_lshl_add_u32 v{V_STO}, v{E+1}, 4, v{E}")

    def params_ops(self):
        P, T = V_RAW, V_E
        L = []
        for i in range(4):
            L.append(f"v_lshlrev_b32 v{P+i}, 16, v{P+i}")
        L += [f"v_add_f32 v{T}, 0x3727c5ac, v{P+1}",
              f"v_cvt_pk_bf16_f32 v{T}, v{T}, v{T}",
              f"v_lshlrev_b32 v{T}, 16, v{T}",
              f"v_sqrt_f32 v{T}, v{T}",
              "s_nop 0",
              f"v_cvt_pk_bf16_f32 v{T}, v{T}, v{T}",
              f"v_lshlrev_b32 v{T}, 16, v{T}",
              f"v_rcp_f32 v{T}, v{T}",
              "s_nop 0",
              f"v_cvt_pk_bf16_f32 v{T}, v{T}, v{T}",
              f"v_lshlrev_b32 v{T}, 16, v{T}",
              f"v_mul_f32 v{T}, v{P+2}, v{T}",
              f"v_cvt_pk_bf16_f32 v{T}, v{T}, v{T}",
              f"v_lshlrev_b32 v{T}, 16, v{T}",
              f"v_fma_f32 v{T+1}, -v{P}, v{T}, v{P+3}",
              f"v_mul_f32 v{T}, s{S_L}, v{T}",
              f"v_mul_f32 v{T+1}, s{S_L}, v{T+1}",
              f"ds_write_b32 v{V_PWR}, v{T}",
              f"ds_write_b32 v{V_PWR}, v{T+1} offset:1024"]
        return L

    def wave_main(self, wv):
        A = self.A
        o = self.o
        nw = 7 if wv < 3 else 6
        self.raw(".p2align 12")
        self.label(f"L_w{wv}")
        A("s_cbranch_vccnz L_backA")
        A(f"s_waitcnt vmcnt({nw + self.after_w1[wv]})")
        A("s_barrier")
        self.stamp(3)
        for i in self.w_reads(0) + self.x_reads(wv, 0):
            A(i)
        first = self.x_dma(wv, 0) + self.x_dma(wv, 1) + self.w_dma(wv)
        fg = o.get("fgap", 4)
        first_late = [(wv + idx * fg, g) for idx, g in enumerate(first)]
        ev, od = self.setups()
        self.step(wv, 0, ev, 0, 3, late_override=first_late, vm_override=self.after_w1[wv] + 8 + nw)
        A(f"s_branch L_mid{wv}")
        self.label(f"L_loop{wv}")
        self.step(wv, 0, ev, 0, 3)
        self.label(f"L_mid{wv}")
        self.step(wv, 0, ev, 3, 5)
        A(f"s_cbranch_scc1 L_tail")
        self.step(wv, 1, od)
        A(f"s_branch L_loop{wv}")

    def setups(self):
        ev = [[f"s_mov_b32 s{S_WDST}, s{S_WCUR}", f"s_add_u32 s{S_WCUR}, s{S_WCUR}, {WBUF}"],
              [f"s_cmp_eq_u32 s{S_WCUR}, {WEND}", f"s_cselect_b32 s{S_WCUR}, {WBASE}, s{S_WCUR}"],
              [f"v_add_u32 v{V_WRD}, s{S_WCUR}, v{V_WLANE}", f"s_add_u32 s{S_WSOFF}, s{S_WSOFF}, {WSTEP}"],
              [f"v_add_u32 v{V_WRD2}, s{S_WCUR}, v{V_WLANE2}"],
              [f"s_add_u32 s{S_XSOFF}, s{S_XSOFF}, 128", f"v_xor_b32 v{V_XRD0}, {XBUF}, v{V_XRD0}"],
              [f"v_xor_b32 v{V_XRD1}, {XBUF}, v{V_XRD1}", f"s_xor_b32 s{S_XM0}, s{S_XM0}, {XBUF}"]]
        return ev, ev[:4]

    def step(self, wv, odd, setup, lo=0, hi=5, late_override=None, vm_override=None):
        A = self.A
        o = self.o
        nw = 7 if wv < 3 else 6
        win = nw + 4
        groups = self.mfma_groups(wv, odd)
        n = [len(g) for g in groups]
        start = [sum(n[:i]) for i in range(6)]
        total = sum(n)
        fill = [[] for _ in range(total)]
        pre = [[] for _ in range(total)]

        def spread(items, lo_, hi_):
            m = len(items)
            for idx, it in enumerate(items):
                fill[lo_ + (idx * (hi_ - lo_)) // m].append(it)

        xr1 = self.x_reads(wv, 1) if not odd else []
        spread(self.w_reads(1) + xr1[0:3], start[0], start[0] + 16)
        spread(self.w_reads(2) + xr1[3:6], start[1], start[1] + 16)
        spread(self.w_reads(3) + self.w_reads(4) + xr1[6:9], start[2], start[2] + 16)
        for gi in range(3):
            pre[start[gi]].append("s_waitcnt lgkmcnt(0)")
        peeled = late_override is not None
        tch = 1 if (o.get("touch", 1) and wv < 2) else 0
        if peeled:
            vm = vm_override
            if o.get("touch", 1) and wv >= 2 and o.get("p2touch", 1):
                fill[o.get("p2pos", 61)].extend(self.touch())
                vm += 1
        elif odd:
            vm = nw + tch
            if tch:
                fill[o.get("tpos", 8) + wv * o.get("tsep", 0)].extend(self.touch())
        else:
            vm = nw + 8 + tch
        if o.get("stamps"):
            pre[start[0]].append(f"s_memtime s[{S_ST}:{S_ST+1}]")
            fill[start[1]].extend([f"v_mov_b32 v{V_STMP0}, s{S_ST}", f"ds_write_b32 v{V_STMP1}, v{V_STMP0}", f"v_add_u32 v{V_STMP1}, 4, v{V_STMP1}"])
        for idx, g in enumerate(setup):
            fill[start[2] + 16 + idx].extend(g)
        fill[start[3] - 1].append(f"s_waitcnt vmcnt({vm}) lgkmcnt(0)")
        pre[start[3]].append("s_barrier")
        spread(self.w_reads(0) + (self.x_reads(wv, 0) if odd else []), start[3], start[3] + 22)
        wg = o.get("wgap", 4)
        for idx, g in enumerate(self.w_dma(wv)):
            pos = start[3] + 1 + (wv * wg) // 4 + idx * wg
            assert pos < total - 2
            fill[pos].extend(g)
        if late_override is None:
            xg = o.get("xgap", 6)
            late = [] if odd else [(o.get("xpos", 2) + (wv * xg) // 4 + idx * xg, g) for idx, g in enumerate(self.x_dma(wv, 0) + self.x_dma(wv, 1))]
        else:
            late = late_override
        for pos, g in late:
            assert pos < start[2] + 16, pos
            fill[pos].extend(g)
        if not odd:
            fill[total - 2].extend([f"s_add_u32 s{S_CNT}, s{S_CNT}, 1", f"s_cmp_eq_u32 s{S_CNT}, 8"])
        flat = [m for g in groups for m in g]
        if peeled:
            seen = set()
            for i, m in enumerate(flat):
                c = m.split()[1]
                if c not in seen:
                    seen.add(c)
                    flat[i] = m[:m.rindex(",")] + ", 0"
        for i in range(start[lo], start[hi]):
            for x in pre[i]: A(x)
            A(flat[i])
            for x in fill[i]: A(x)

    def tail(self):
        o = self.o
        out = []
        st = {"nds": 0}

        def E_(s):
            out.append(s)
            if s.startswith("ds_"):
                st["nds"] += 1
                return st["nds"]
            return None

        def wait_ds(seq):
            n = st["nds"] - seq
            if st.get("waited", 0) >= seq:
                return
            st["waited"] = seq
            out.append(f"s_waitcnt lgkmcnt({min(n, 15)})")

        XS = {15: 1, 16: 0, 17: 2}

        def wread(stage, jj, k, dst):
            slot = stage - 15
            r = []
            for e in range(2):
                off = k * 9216 + e * 2304 + (jj * 32 if jj < 4 else 0)
                if slot < 2:
                    va = V_WT01 if jj < 4 else V_WO01
                    off += slot * WBUF
                else:
                    va = V_WT2 if jj < 4 else V_WO2
                r.append(f"ds_read_b64_tr_b16 a[{dst+2*e}:{dst+2*e+1}], v{va} offset:{off}")
            return r

        def xreads(stage):
            h = stage - 16
            r = []
            for q in range(10):
                b = XF(XS[stage], q)
                if q == 0:
                    r.append(f"ds_read_b128 a[{b}:{b+3}], v{V_XT0+h}")
                elif q == 9:
                    r.append(f"ds_read_b128 a[{b}:{b+3}], v{V_XT9+h}")
                else:
                    r.append(f"ds_read_b128 a[{b}:{b+3}], v{V_XT+h} offset:{(q-1)*1024}")
            return r

        npre = o.get("npre", 3)
        phases = []
        for jj in range(npre):
            phases.append((jj, [15], {(15, k): WFb(jj, k) for k in range(3)}, False))
        bufs = [TA, TB]
        for jj in range(5):
            stages = [16, 17] if jj < npre else [15, 16, 17]
            base = bufs[jj % 2]
            regs = {}
            for i, (sg, k) in enumerate([(sg, k) for sg in stages for k in range(3)]):
                regs[(sg, k)] = base + 4 * i
            phases.append((jj, stages, regs, True))

        def phase_mfmas(ph_, ch):
            jj, stages, regs, final = ph_
            res = []
            sl = range(8) if jj < 4 else range(4)
            for s in sl:
                seq = [(sg, k) for sg in stages for k in range(3)]
                if s % 2: seq = seq[::-1]
                for i, (sg, k) in enumerate(seq):
                    q = s + k + (4 * ch if jj == 4 else 0)
                    res.append((mfma(ACC(jj, s), regs[(sg, k)], XF(XS[sg], q)), (jj, s) if (final and i == len(seq) - 1) else None))
            return res

        def tile_plain(jj, s, tmp, dst):
            acc = ACC(jj, s)
            par = V_PAR + 8 * jj
            y, e = tmp, tmp + 4
            ops = []
            for i in range(4): ops.append((1, f"v_fma_f32 v{y+i}, v{acc+i}, v{par+i}, v{par+4+i}"))
            for i in range(4): ops.append((2, f"v_exp_f32 v{e+i}, -v{y+i}"))
            for i in range(4): ops.append((1, f"v_fma_f32 v{e+i}, v{e+i}, s{S_L}, s{S_L}"))
            for i in range(4): ops.append((2, f"v_rcp_f32 v{e+i}, v{e+i}"))
            for i in range(4): ops.append((1, f"v_mul_f32 v{y+i}, v{y+i}, v{e+i}"))
            ops.append((1, f"v_cvt_pk_bf16_f32 v{dst}, v{y}, v{y+1}"))
            ops.append((1, f"v_cvt_pk_bf16_f32 v{dst+1}, v{y+2}, v{y+3}"))
            return ops

        def tile_pk(jj, s, tmp, dst):
            acc = ACC(jj, s)
            par = V_PAR + 8 * jj
            y, e = tmp, tmp + 4
            ins = [f"v_pk_fma_f32 v[{y}:{y+1}], v[{acc}:{acc+1}], v[{par}:{par+1}], v[{par+4}:{par+5}]",
                   f"v_pk_fma_f32 v[{y+2}:{y+3}], v[{acc+2}:{acc+3}], v[{par+2}:{par+3}], v[{par+6}:{par+7}]"]
            ins += [f"v_exp_f32 v{e+i}, -v{y+i}" for i in range(4)]
            ins += [f"v_pk_fma_f32 v[{e}:{e+1}], v[{e}:{e+1}], s[{S_L}:{S_L+1}], s[{S_L}:{S_L+1}]",
                    f"v_pk_fma_f32 v[{e+2}:{e+3}], v[{e+2}:{e+3}], s[{S_L}:{S_L+1}], s[{S_L}:{S_L+1}]"]
            ins += [f"v_rcp_f32 v{e+i}, v{e+i}" for i in range(4)]
            ins += [f"v_pk_mul_f32 v[{y}:{y+1}], v[{y}:{y+1}], v[{e}:{e+1}]",
                    f"v_pk_mul_f32 v[{y+2}:{y+3}], v[{y+2}:{y+3}], v[{e+2}:{e+3}]",
                    f"v_cvt_pk_bf16_f32 v{dst}, v{y}, v{y+1}",
                    f"v_cvt_pk_bf16_f32 v{dst+1}, v{y+2}, v{y+3}"]
            return ins

        def stage_write(jj, s, dst):
            if jj < 4:
                return f"ds_write_b64 v{V_SW + (jj & 1)}, v[{dst}:{dst+1}] offset:{s*1024}"
            return f"ds_write_b64 v{V_SWO}, v[{dst}:{dst+1}] offset:{s*512}"

        done = set()
        pending = []

        def after_write(jj, s):
            done.add((jj, s))
            if jj < 4:
                if (jj ^ 1, s) in done:
                    r = ACC(jj, s)
                    seq = E_(f"ds_read_b128 v[{r}:{r+3}], v{V_SR} offset:{s*1024}")
                    fl = self.stA if jj < 2 else self.stB
                    pending.append([seq, f"buffer_store_dwordx4 v[{r}:{r+3}], v{V_ST + (s >> 2)}, s[{SRD_O}:{SRD_O+3}], 0 offen offset:{(s&3)*1152 + (jj>>1)*64}{fl}", 0])
            elif (4, s ^ 1) in done:
                r = ACC(4, s)
                seq = E_(f"ds_read_b128 v[{r}:{r+3}], v{V_SRO} offset:{(s>>1)*1024}")
                pending.append([seq, f"buffer_store_dwordx4 v[{r}:{r+3}], v{V_STO}, s[{SRD_O}:{SRD_O+3}], 0 offen offset:{(s>>1)*2*1152}{self.stO}", 0])

        def flush_pending(min_age):
            while pending and pending[0][2] >= min_age:
                seq, ins, _ = pending.pop(0)
                wait_ds(seq)
                E_(ins)

        vs = {"queue": [], "cur": None, "ops": [], "n": 0}
        ready = {}
        params_seq = [None]

        def valu_fill(cap):
            while cap > 0:
                if vs["cur"] is None:
                    if not vs["queue"]:
                        return
                    t = vs["queue"][0]
                    if len(out) - ready[t] < 9:
                        return
                    vs["queue"].pop(0)
                    vs["cur"] = t
                    k = vs["n"] % 2
                    vs["n"] += 1
                    vs["dst"] = V_E + 16 + 2 * k
                    vs["ops"] = tile_plain(t[0], t[1], V_E + 8 * k, vs["dst"])
                    wait_ds(params_seq[0])
                w, ins = vs["ops"][0]
                if w > cap:
                    return
                vs["ops"].pop(0)
                E_(ins)
                cap -= w
                if not vs["ops"]:
                    t = vs["cur"]
                    E_(stage_write(t[0], t[1], vs["dst"]))
                    after_write(*t)
                    vs["cur"] = None

        def run_phase(idx, ch, aux, need_seq):
            ms = phase_mfmas(phases[idx], ch)
            n = len(ms)
            span = max(1, n - 8)
            place = [[] for _ in range(n)]
            for i, a in enumerate(aux):
                place[(i * span) // len(aux)].append(a)
            last = None
            if need_seq is not None:
                wait_ds(need_seq)
            for i, (m, fin) in enumerate(ms):
                E_(m)
                if fin is not None:
                    ready[fin] = len(out)
                    vs["queue"].append(fin)
                cap = 2
                for a in place[i]:
                    sq = E_(a)
                    if sq is not None: last = sq
                    if a.startswith("v_"): cap -= 2 if ("sqrt" in a or "rcp" in a) else 1
                for p in pending: p[2] += 1
                flush_pending(6)
                valu_fill(cap)
            return last

        def wset(idx):
            jj, stages, regs, _ = phases[idx]
            r = []
            for (sg, k), reg in regs.items():
                r += wread(sg, jj, k, reg)
            return r

        nph = len(phases)
        assert npre >= 2
        pr = []
        for jj in range(4):
            pr.append(f"ds_read_b128 v[{V_PAR+8*jj}:{V_PAR+8*jj+3}], v{V_PRF} offset:{64*jj}")
            pr.append(f"ds_read_b128 v[{V_PAR+8*jj+4}:{V_PAR+8*jj+7}], v{V_PRF} offset:{64*jj+1024}")
        pr.append(f"ds_read_b128 v[{V_PAR+32}:{V_PAR+35}], v{V_PRO}")
        pr.append(f"ds_read_b128 v[{V_PAR+36}:{V_PAR+39}], v{V_PRO} offset:1024")
        out.append("s_waitcnt vmcnt(6) lgkmcnt(0)")
        out.append("s_barrier")
        xr = xreads(16) + xreads(17)
        nxp = npre - 1 if npre > 2 else 2
        need = None
        for idx in range(nph - 1):
            aux = wset(idx + 1)
            if idx < nxp:
                aux += xr[idx * 20 // nxp:(idx + 1) * 20 // nxp]
            if idx == npre - 1:
                out.append("s_waitcnt vmcnt(0) lgkmcnt(0)")
                out.append("s_barrier")
                st["waited"] = st["nds"]
                aux += pr
            if idx == 0:
                po = self.params_ops()
                rest = aux
                aux = []
                while po or rest:
                    if rest: aux.append(rest.pop(0))
                    for _ in range(2):
                        if po: aux.append(po.pop(0))
            need = run_phase(idx, 0, aux, need)
            if idx == npre - 1:
                params_seq[0] = need
        saved = (list(vs["queue"]), vs["cur"], list(vs["ops"]), vs["n"], vs.get("dst"), set(done), [list(p) for p in pending], dict(ready), dict(st))
        out.append(f"s_cmp_eq_u32 s{S_CH}, 1")
        out.append("s_cbranch_scc1 L_odd1")
        mark = len(out)
        run_phase(nph - 1, 0, [], need)
        out.append("s_branch L_oddj")
        len0 = len(out) - mark
        out.append("L_odd1:")
        shift = len(out) - mark
        vs["queue"], vs["cur"], vs["ops"], vs["n"], vs["dst"] = list(saved[0]), saved[1], list(saved[2]), saved[3], saved[4]
        done.clear(); done.update(saved[5])
        pending[:] = [list(p) for p in saved[6]]
        ready.clear(); ready.update({k: v + shift for k, v in saved[7].items()})
        st.clear(); st.update(saved[8])
        run_phase(nph - 1, 1, [], need)
        out.append("L_oddj:")
        if o.get("stamps"):
            out.append(f"s_memtime s[{S_TS+10}:{S_TS+11}]")
        if vs["cur"] is not None:
            ops = vs["ops"]
            for i, (w, ins) in enumerate(ops):
                E_(ins)
            t = vs["cur"]
            E_(stage_write(t[0], t[1], vs["dst"]))
            after_write(*t)
            vs["cur"] = None
        rem = list(vs["queue"])
        self.nhidden = 36 - len(rem)
        order = []
        remset = set(rem)
        for t in rem:
            if t not in remset: continue
            remset.discard(t)
            partner = (t[0] ^ 1, t[1]) if t[0] < 4 else (4, t[1] ^ 1)
            order.append(t)
            if partner in remset:
                remset.discard(partner)
                order.append(partner)
        out.append("s_nop 7")
        k = 0
        i = 0
        while i < len(order):
            grp = order[i:i + 2]
            i += 2
            d = V_E + 16
            lists = [tile_pk(t[0], t[1], V_E + 8 * n_, d + 2 * n_) for n_, t in enumerate(grp)]
            if len(lists) == 1:
                a = lists[0]
                for j, x in enumerate(a):
                    E_(x)
                    if j in (5, 11): E_("s_nop 0")
            else:
                for j, (x, y) in enumerate(zip(*lists)):
                    E_(x); E_(y)
                    if j == 7:
                        for p in pending: p[2] += 100
                        flush_pending(6)
            for n_, t in enumerate(grp):
                E_(stage_write(t[0], t[1], d + 2 * n_))
                after_write(*t)
        for p in pending: p[2] += 100
        flush_pending(0)
        return out

    def emit_tail(self, out):
        A = self.A
        self.raw(".p2align 12")
        page = 0
        self.label("L_tail")
        self.label("L_tp0")
        A("s_cbranch_vccnz L_back")
        self.stamp(4)
        size = 4 + (16 if self.o.get("stamps") else 0)
        for ins in out:
            if ins.endswith(":"):
                self.label(ins[:-1]); continue
            if size >= 4096 * (page + 1):
                page += 1
                self.label(f"L_tp{page}")
                A("s_cbranch_vccnz L_back")
                size += 4
            A(ins)
            size += ins_size(ins)
        return page + 1

    def finish(self):
        A = self.A
        o = self.o
        self.stamp(6)
        if o.get("stamps"):
            A("s_waitcnt vmcnt(0)")
            self.stamp(7)
            A(f"s_memrealtime s[{S_TS+28}:{S_TS+29}]")
            A("s_waitcnt lgkmcnt(0)")
            A(f"s_lshl_b32 s{S_T0}, s2, 2")
            A(f"s_add_u32 s{S_T0}, s{S_T0}, s{S_WAVE}")
            A(f"s_lshl_b32 s{S_T0}, s{S_T0}, 8")
            A(f"v_mov_b32 v1, s{S_T0}")
            A(f"s_mul_i32 s{S_T1}, s{S_WAVE}, 96")
            A(f"s_add_u32 s{S_T1}, s{S_T1}, {STMP}")
            A(f"v_and_b32 v3, 31, v0")
            A(f"v_lshlrev_b32 v3, 2, v3")
            A(f"v_add_u32 v4, s{S_T1}, v3")
            A(f"ds_read_b32 v4, v4")
            A(f"v_add_u32 v3, v3, v1")
            A("s_waitcnt lgkmcnt(0)")
            A(f"global_store_dword v3, v4, s[{S_WS}:{S_WS+1}] offset:128")
            for i in range(8):
                A(f"v_mov_b32 v2, s{S_TS+2*i}")
                A(f"global_store_dword v1, v2, s[{S_WS}:{S_WS+1}] offset:{4*i}")
            for j, r in enumerate((30, 28, 26, 24)):
                A(f"v_mov_b32 v2, s{S_TS+r}")
                A(f"global_store_dword v1, v2, s[{S_WS}:{S_WS+1}] offset:{32+4*j}")
        A("s_endpgm")
        self.label("L_code_end")

    def emit(self):
        tail = self.tail()
        save = self.L
        self.L = []
        self.ntailpages = self.emit_tail(tail)
        self.L = save
        assert self.ntailpages <= 4, self.ntailpages
        out = [HEADER.rstrip("\n")]
        out.append(f"; @launch grid=(256,1,1) block=(256,1,1) lds={LDS_BYTES + (512 if self.o.get('stamps') else 0)}")
        out.append('.amdgcn_target "amdgcn-amd-amdhsa--gfx950"')
        out.append(".text")
        out.append(f".globl {NAME}")
        out.append(".p2align 12")
        out.append(".p2align 8")
        out.append(f".type {NAME},@function")
        out.append(f"{NAME}:")
        self.prologue()
        for wv in range(4):
            self.wave_main(wv)
        self.emit_tail(tail)
        self.finish()
        out += self.L
        out.append('.section .rodata,"a"')
        out.append(".p2align 6")
        out.append(f".amdhsa_kernel {NAME}")
        out.append("  .amdhsa_next_free_vgpr 512")
        out.append("  .amdhsa_next_free_sgpr 96")
        out.append("  .amdhsa_accum_offset 256")
        out.append("  .amdhsa_group_segment_fixed_size 0")
        out.append("  .amdhsa_kernarg_size 72")
        out.append("  .amdhsa_user_sgpr_count 2")
        out.append("  .amdhsa_user_sgpr_kernarg_segment_ptr 1")
        out.append("  .amdhsa_system_sgpr_workgroup_id_x 1")
        out.append("  .amdhsa_float_denorm_mode_32 3")
        out.append(".end_amdhsa_kernel")
        return "\n".join(out) + "\n"


def ins_size(ins):
    op = ins.split()[0]
    if op.startswith(("v_mfma", "ds_", "buffer_", "global_", "v_pk_", "v_fma_", "v_cvt_pk", "s_memtime", "s_memrealtime")):
        return 8
    if op == "v_exp_f32":
        return 8 if "-v" in ins else 4
    if op in ("v_add_f32",) and "0x" in ins:
        return 8
    if op.startswith(("s_waitcnt", "s_barrier", "s_nop", "s_cbranch", "s_branch", "s_cmp", "v_rcp", "v_sqrt", "v_mul_f32", "v_lshlrev_b32")):
        return 4
    raise ValueError(ins)


if __name__ == "__main__":
    opts = {}
    path = sys.argv[1]
    for a in sys.argv[2:]:
        k, _, v = a.partition("=")
        opts[k] = int(v) if v else 1
    g = Gen(opts)
    open(path, "w").write(g.emit())
    print(path, "tail pages", g.ntailpages, "hidden tiles", g.nhidden)
```

```python
import sys

NAME = "standalone__batchnorm__sampling_kernel"

HEADER = """; Kernarg layout for this problem (72 bytes, ptrs only, base s[0:1]):
"""

W_BYTES = 3 * 576 * 576 * 2
XG_BYTES = 16 * 18432
XBUF = 32768
WBASE = 65536
WBUF = 27648
WEND = WBASE + 3 * WBUF
PARAM = WEND
ZERO = PARAM + 2048
OSTG = ZERO + 64
STMP = OSTG + 8192
LDS_BYTES = STMP
WSTEP = 32 * 1152
ACC0 = 112
LOG2E = 0x3fb8aa3b

S_X, S_W, S_MEAN, S_VAR, S_G, S_B, S_OUT, S_DBG = 4, 6, 8, 10, 12, 14, 16, 18
SRD_X, SRD_W, SRD_O, SRD_T = 20, 24, 28, 32
S_WAVE, S_BG, S_CG, S_J = 36, 37, 38, 39
S_WSOFF, S_XSOFF, S_WCUR, S_XM0, S_CNT, S_WDST = 40, 41, 42, 43, 44, 45
S_T0, S_T1, S_T2, S_T3 = 46, 47, 48, 49
S_L = 50
S_ODD, S_PH, S_CH = 52, 53, 54
S_TOFF, S_TSTEP = 55, 56
S_PC = 58
S_WS = 60
S_ST = 62
S_TS = 64

V_WOFF = 1
V_XOFF = 8
V_WLANE, V_WRD, V_XRD0, V_XRD1, V_WLANE2, V_WRD2, V_TOUCH, V_TDST = 16, 17, 18, 19, 20, 21, 22, 23
V_RAW = 24
V_PWR = 28
V_WT01, V_WT2, V_WO01, V_WO2 = 29, 30, 31, 32
V_XT = 33
V_XT0 = 35
V_XT9 = 37
V_PRF, V_PRO = 39, 40
V_SW = 41
V_SWO, V_SR, V_SRO = 43, 44, 45
V_ST = 46
V_STO = 48
V_STMP0, V_STMP1 = 49, 50
V_PAR = 52
V_E = 92


def XF(st, q):
    b = (st * 10 + q) * 4
    return b


def WFb(jj, k):
    return 120 + (jj * 3 + k) * 4


TA, TB = 180, 216


def ACC(jj, s):
    return ACC0 + (jj * 8 + s) * 4 if jj < 4 else ACC0 + 128 + s * 4


def mfma(c, a, b):
    return f"v_mfma_f32_16x16x32_bf16 v[{c}:{c+3}], a[{a}:{a+3}], a[{b}:{b+3}], v[{c}:{c+3}]"


class Gen:
    def __init__(self, opts):
        self.L = []
        self.o = opts
        fl = {0: "", 1: " nt", 2: " sc1", 3: " sc0 sc1", 4: " nt sc1", 5: " nt sc0 sc1", 6: " sc0", 7: " nt sc0"}
        self.stO = fl[opts.get("stO", 0)]
        self.ldX = fl[opts.get("ldX", 0)]
        self.ldW = fl[opts.get("ldW", 0)]
        self.ldT = fl[opts.get("ldT", 0)]
        self.stA = fl[opts.get("stA", 0)]
        self.stB = fl[opts.get("stB", 0)]

    def A(self, s):
        self.L.append("    " + s)

    def label(self, s):
        self.L.append(s + ":")

    def C(self, s):
        self.L.append("    ; " + s)

    def raw(self, s):
        self.L.append(s)

    def stamp(self, idx):
        if self.o.get("stamps"):
            self.A(f"s_memtime s[{S_TS+2*idx}:{S_TS+2*idx+1}]")
            if idx == 3: self.A(f"s_memrealtime s[{S_TS+26}:{S_TS+27}]")
            if idx == 4: self.A(f"s_memrealtime s[{S_TS+24}:{S_TS+25}]")

    def mfma_groups(self, wv, h):
        ph, ch = wv >> 1, wv & 1
        groups = []
        for jj in range(5):
            g = []
            sl = range(8) if jj < 4 else range(4 * ch, 4 * ch + 4)
            for s in sl:
                up = (s % 2 == 0) if ph == 0 else (s % 2 == 1)
                for k in ([0, 1, 2] if up else [2, 1, 0]):
                    q = s + k
                    if (ph == 0 and q == 0) or (ph == 1 and q == 9):
                        continue
                    g.append(mfma(ACC(jj, s if jj < 4 else s - 4 * ch), WFb(jj, k), XF(h, q)))
            groups.append(g)
        return groups

    def w_reads(self, jj):
        out = []
        for k in range(3):
            for e in range(2):
                b = WFb(jj, k) + 2 * e
                if jj < 4:
                    out.append(f"ds_read_b64_tr_b16 a[{b}:{b+1}], v{V_WRD} offset:{k*9216 + e*2304 + jj*32}")
                else:
                    out.append(f"ds_read_b64_tr_b16 a[{b}:{b+1}], v{V_WRD2} offset:{k*9216 + e*2304}")
        return out

    def x_reads(self, wv, h):
        ph = wv >> 1
        out = []
        for q in (range(1, 10) if ph == 0 else range(0, 9)):
            s = 8 * ph - 1 + q
            b = XF(h, q)
            out.append(f"ds_read_b128 a[{b}:{b+3}], v{V_XRD0 + h} offset:{s*1024}")
        return out

    def w_dma(self, wv):
        n = 7 if wv < 3 else 6
        out = []
        for i in range(n):
            ins = []
            if i % 4 == 0:
                ins.append(f"s_add_u32 m0, s{S_WDST}, {wv*7168 + i*1024}")
                ins.append("s_nop 0")
            ins.append(f"buffer_load_dwordx4 v{V_WOFF+i}, s[{SRD_W}:{SRD_W+3}], s{S_WSOFF} offen offset:{(i%4)*1024}{self.ldW} lds")
            out.append(ins)
        return out

    def x_dma(self, wv, p):
        out = []
        for i in range(4):
            ins = []
            if i == 0:
                ins.append(f"s_add_u32 m0, s{S_XM0}, {p*16384 + wv*4096}")
                ins.append("s_nop 0")
            ins.append(f"buffer_load_dwordx4 v{V_XOFF+4*p+i}, s[{SRD_X}:{SRD_X+3}], s{S_XSOFF} offen offset:{i*1024}{self.ldX} lds")
            out.append(ins)
        return out

    def touch(self):
        return [f"s_add_u32 s{S_TOFF}, s{S_TOFF}, s{S_TSTEP}",
                f"buffer_load_dword v{V_TDST}, v{V_TOUCH}, s[{SRD_T}:{SRD_T+3}], s{S_TOFF} offen{self.ldT}"]

    def prologue(self):
        A = self.A
        o = self.o
        E = V_E
        A("s_cmp_ge_u32 s2, 256")
        A("s_cbranch_scc1 L_end0")
        A(f"s_load_dwordx16 s[4:19], s[0:1], 0")
        if o.get("stamps"):
            A(f"s_load_dwordx2 s[{S_WS}:{S_WS+1}], s[0:1], 64")
            A(f"s_memrealtime s[{S_TS+30}:{S_TS+31}]")
        self.stamp(0)
        A(f"v_lshrrev_b32 v{E}, 6, v0")
        A(f"v_lshlrev_b32 v{V_PWR}, 2, v0")
        A(f"v_readfirstlane_b32 s{S_WAVE}, v{E}")
        A(f"v_and_b32 v0, 63, v0")
        self.C("workgroup decode: xcd = id&7, j = id>>3, cg = j&3, bg = xcd*8 + (j>>2)")
        A(f"s_and_b32 s{S_T0}, s2, 7")
        A(f"s_lshr_b32 s{S_J}, s2, 3")
        A(f"s_and_b32 s{S_CG}, s{S_J}, 3")
        A(f"s_lshr_b32 s{S_T1}, s{S_J}, 2")
        A(f"s_lshl_b32 s{S_T0}, s{S_T0}, 3")
        A(f"s_add_u32 s{S_BG}, s{S_T0}, s{S_T1}")
        if o.get("codepf"):
            self.C("pull the kernel's own code into L2: WG j, wave v reads lines (j*4+v)*NL .. +NL-1")
            nl = o.get("codepf")
            A(f"s_getpc_b64 s[{S_PC}:{S_PC+1}]")
            self.label("L_pc")
            A(f"s_lshl_b32 s{S_T0}, s{S_J}, 2")
            A(f"s_add_u32 s{S_T0}, s{S_T0}, s{S_WAVE}")
            A(f"s_mul_i32 s{S_T0}, s{S_T0}, {nl*128}")
            A(f"v_and_b32 v{E}, {nl-1}, v0")
            A(f"v_lshlrev_b32 v{E}, 7, v{E}")
            A(f"v_add_u32 v{E}, s{S_T0}, v{E}")
            A(f"v_min_u32 v{E}, L_code_end-L_pc-4, v{E}")
            A(f"global_load_dword v{V_TDST}, v{E}, s[{S_PC}:{S_PC+1}]")
        self.C("x DMA voffsets: (8p + (l>>3))*18432 + ((l&7) ^ (4p + (l>>4)))*16 + (4v+i)*1152 - i*1024")
        A(f"v_lshrrev_b32 v{E}, 3, v0")
        A(f"v_mul_u32_u24 v{E}, 18432, v{E}")
        A(f"v_and_b32 v{E+1}, 7, v0")
        A(f"v_lshrrev_b32 v{E+2}, 4, v0")
        A(f"v_xor_b32 v{E+1}, v{E+1}, v{E+2}")
        A(f"v_lshl_add_u32 v{E}, v{E+1}, 4, v{E}")
        A(f"s_mul_i32 s{S_T0}, s{S_WAVE}, {4*1152}")
        A(f"v_add_u32 v{V_XOFF}, s{S_T0}, v{E}")
        A(f"v_xor_b32 v{E}, 64, v{V_XOFF}")
        A(f"v_add_u32 v{V_XOFF+4}, {8*18432}, v{E}")
        for i in range(1, 4):
            A(f"v_add_u32 v{V_XOFF+i}, {128*i}, v{V_XOFF}")
            A(f"v_add_u32 v{V_XOFF+4+i}, {128*i}, v{V_XOFF+4}")
        self.C("w voffset recurrence state: t = Q*3641 (Q = 448*wave + 64*i + lane), lc = 16*lane + 1024*7*wave")
        A(f"s_mul_i32 s{S_T0}, s{S_WAVE}, 448")
        A(f"v_add_u32 v{E}, s{S_T0}, v0")
        A(f"v_lshlrev_b32 v{E+1}, 4, v{E}")
        A(f"v_mul_u32_u24 v{E}, 3641, v{E}")
        A(f"s_mul_i32 s{S_T0}, s{S_BG}, {XG_BYTES}")
        A(f"s_lshl_b32 s{S_T1}, s{S_CG}, 8")
        A(f"s_mul_i32 s{S_ODD}, s{S_CG}, 224")
        A(f"s_sub_u32 s{S_ODD}, 768, s{S_ODD}")
        A(f"s_movk_i32 s{S_WCUR}, -288")
        A(f"s_mov_b32 s{SRD_X+2}, {XG_BYTES}")
        A(f"s_mov_b32 s{SRD_X+3}, 0x20000")
        A(f"s_mov_b32 s{SRD_W+3}, 0x20000")
        A(f"s_sub_u32 s{SRD_W+2}, {W_BYTES}, s{S_T1}")
        A(f"s_lshl_b32 s{S_XM0}, s{S_WAVE}, 12")
        A(f"s_mul_i32 s{S_WDST}, s{S_WAVE}, 7168")
        A(f"s_movk_i32 s{S_T2}, 864")
        A(f"s_movk_i32 s{S_T3}, 4608")
        A(f"s_mov_b32 s{S_CNT}, 626688")
        A(f"s_mov_b32 m0, s{S_XM0}")

        def woff(i):
            t, lc, a = E, E + 1, E + 2
            if i:
                A(f"v_add_u32 v{t}, {64*3641}, v{t}")
            A(f"v_lshrrev_b32 v{a}, 16, v{t}")
            A(f"v_bfe_u32 v{a+1}, v{t}, 18, 1")
            A(f"v_bfe_u32 v{a+2}, v{t}, 19, 1")
            A(f"v_lshrrev_b32 v{a+3}, 21, v{t}")
            if i == 4:
                A(f"v_add_u32 v{lc}, 4096, v{lc}")
            A(f"v_mad_i32_i24 v{a+4}, v{a}, s{S_WCUR}, v{lc}")
            A(f"v_sub_u32 v{a+1}, v{a+1}, v{a+2}")
            A(f"v_mad_u32_u24 v{a}, v{a}, s{S_T2}, v{lc}")
            A(f"v_bfe_u32 v{a+4}, v{a+4}, 8, 1")
            A(f"v_mad_i32_i24 v{a}, v{a+1}, s{S_T3}, v{a}")
            A(f"v_mad_u32_u24 v{a}, v{a+4}, s{S_ODD}, v{a}")
            A(f"v_mad_u32_u24 v{V_WOFF+i}, v{a+3}, s{S_CNT}, v{a}")

        self.C("L2 prefetch (touch) address: wave&1 == 0: w lines, 1: x lines")
        A(f"s_lshr_b32 s{S_PH}, s{S_WAVE}, 1")
        A(f"s_and_b32 s{S_CH}, s{S_WAVE}, 1")
        A("s_cbranch_scc1 L_tx")
        A(f"v_min_u32 v{E+2}, 53, v0")
        A(f"v_mul_u32_u24 v{E+3}, 3641, v{E+2}")
        A(f"v_lshrrev_b32 v{E+3}, 16, v{E+3}")
        A(f"v_mul_u32_u24 v{E+3}, {663552-18*128}, v{E+3}")
        A(f"v_lshl_add_u32 v{V_TOUCH}, v{E+2}, 7, v{E+3}")
        A(f"s_mul_i32 s{S_TOFF}, s{S_J}, {18*128}")
        A(f"v_add_u32 v{V_TOUCH}, s{S_TOFF}, v{V_TOUCH}")
        A(f"s_mov_b32 s{S_TSTEP}, {64*1152}")
        A("s_branch L_tdone")
        self.label("L_tx")
        A(f"s_lshl_b32 s{S_TOFF}, s{S_CG}, 6")
        A(f"v_add_u32 v{E+2}, s{S_TOFF}, v0")
        A(f"v_mul_u32_u24 v{V_TOUCH}, 1152, v{E+2}")
        A(f"s_movk_i32 s{S_TSTEP}, 128")
        self.label("L_tdone")
        A(f"s_mul_i32 s{S_TOFF}, s{S_TSTEP}, s{S_PH}")
        A(f"s_mov_b32 s{SRD_T+3}, 0x20000")
        A("s_waitcnt lgkmcnt(0)")
        self.stamp(1)
        A(f"s_add_u32 s{SRD_X}, s{S_X}, s{S_T0}")
        A(f"s_addc_u32 s{SRD_X+1}, s{S_X+1}, 0")
        A(f"s_cmp_eq_u32 s{S_CH}, 1")
        A(f"s_cselect_b32 s{SRD_T}, s{SRD_X}, s{S_W}")
        A(f"s_cselect_b32 s{SRD_T+1}, s{SRD_X+1}, s{S_W+1}")
        A(f"s_cselect_b32 s{SRD_T+2}, s{SRD_X+2}, s{SRD_W+2}")
        pt = o.get("ptouch", 15)
        if pt:
            if pt != 15:
                A(f"s_lshr_b32 s{S_XSOFF}, {pt}, s{S_WAVE}")
                A(f"s_and_b32 s{S_XSOFF}, s{S_XSOFF}, 1")
                A("s_cbranch_scc0 L_nopt")
            A(f"buffer_load_dword v{V_TDST}, v{V_TOUCH}, s[{SRD_T}:{SRD_T+3}], s{S_TOFF} offen{self.ldT}")
            self.label("L_nopt")
        A(f"s_add_u32 s{SRD_W}, s{S_W}, s{S_T1}")
        A(f"s_addc_u32 s{SRD_W+1}, s{S_W+1}, 0")
        def dma0(n):
            if n < 8:
                p, i = divmod(n, 4)
                if n == 4:
                    A(f"s_add_u32 m0, s{S_XM0}, 16384")
                    A("s_nop 0")
                A(f"buffer_load_dwordx4 v{V_XOFF+4*p+i}, s[{SRD_X}:{SRD_X+3}], 0 offen offset:{i*1024}{self.ldX} lds")
            else:
                i = n - 8
                if i % 4 == 0:
                    A(f"s_add_u32 m0, s{S_WDST}, {WBASE + i*1024}")
                    A("s_nop 0")
                if i == 6:
                    A(f"s_cmp_eq_u32 s{S_WAVE}, 3")
                    A("s_cbranch_scc1 L_skw0")
                A(f"buffer_load_dwordx4 v{V_WOFF+i}, s[{SRD_W}:{SRD_W+3}], 0 offen offset:{(i%4)*1024}{self.ldW} lds")
                if i == 6:
                    self.label("L_skw0")
        nfirst = o.get("nfirst", 3)
        for n in range(min(nfirst, 8)):
            dma0(n)
        for i in range(7):
            woff(i)
            if 8 + i < nfirst:
                dma0(8 + i)
        A(f"s_add_u32 s{SRD_O}, s{S_OUT}, s{S_T0}")
        A(f"s_addc_u32 s{SRD_O+1}, s{S_OUT+1}, 0")
        A(f"s_mov_b32 s{SRD_O+2}, {XG_BYTES}")
        A(f"s_mov_b32 s{SRD_O+3}, 0x20000")
        if o.get("visit", 3) & 1:
            self.C("warm the instruction cache: hop through the first line of this wave's loop page and come back")
            for r in (V_WRD, V_WRD2, V_XRD0, V_XRD1, V_ST, V_ST + 1, V_STO):
                A(f"v_mov_b32 v{r}, 0")
            A("s_mov_b64 vcc, -1")
            for v in range(1, 4):
                A(f"s_cmp_eq_u32 s{S_WAVE}, {v}")
                A(f"s_cbranch_scc1 L_w{v}")
            A("s_branch L_w0")
        self.label("L_backA")
        self.C("zero the accumulators not started with C=0, and the padding slots of X set 1")
        for r in range(ACC(3, 0), 256):
            A(f"v_mov_b32 v{r}, 0")
        for q in (0, 9):
            for i in range(4):
                A(f"v_accvgpr_write_b32 a{XF(1, q) + i}, 0")
        self.C("LDS read addresses")
        A(f"v_lshrrev_b32 v{E}, 5, v0")
        A(f"v_lshlrev_b32 v{E}, 4, v{E}")
        A(f"v_bfe_u32 v{E+1}, v0, 2, 3")
        A(f"v_add_u32 v{E}, v{E}, v{E+1}")
        A(f"v_mul_u32_u24 v{E}, 288, v{E}")
        A(f"v_and_b32 v{E+1}, 3, v0")
        A(f"v_lshl_add_u32 v{E}, v{E+1}, 3, v{E}")
        A(f"v_add_u32 v{V_WLANE2}, 256, v{E}")
        A(f"s_lshl_b32 s{S_T1}, s{S_CH}, 7")
        A(f"v_add_u32 v{V_WLANE}, s{S_T1}, v{E}")
        A(f"v_add_u32 v{V_WRD}, {WBASE}, v{V_WLANE}")
        A(f"v_add_u32 v{V_WRD2}, {WBASE}, v{V_WLANE2}")
        A(f"v_bfe_u32 v{E}, v0, 3, 1")
        A(f"v_lshlrev_b32 v{E}, 14, v{E}")
        A(f"v_and_b32 v{E+1}, 7, v0")
        A(f"v_lshl_add_u32 v{E}, v{E+1}, 7, v{E}")
        A(f"v_bfe_u32 v{E+1}, v0, 1, 3")
        A(f"v_lshrrev_b32 v{E+2}, 4, v0")
        A(f"v_xor_b32 v{E+1}, v{E+1}, v{E+2}")
        A(f"v_lshl_add_u32 v{V_XRD0}, v{E+1}, 4, v{E}")
        A(f"v_xor_b32 v{V_XRD1}, 64, v{V_XRD0}")
        self.tail_addr()
        A(f"s_lshl_b32 s{S_T3}, s{S_CG}, 8")
        A(f"v_lshrrev_b32 v{E}, 1, v{V_PWR}")
        A(f"v_lshrrev_b32 v{E+1}, 9, v{V_PWR}")
        A(f"v_mad_u32_u24 v{E}, v{E+1}, s{S_ODD}, v{E}")
        A(f"v_add_u32 v{E}, s{S_T3}, v{E}")
        A(f"v_min_u32 v{E}, 1150, v{E}")
        A(f"v_add_u32 v{V_PWR}, {PARAM}, v{V_PWR}")
        if o.get("visit", 3) & 2:
            self.C("same for tail page (wave id)")
            A("s_mov_b64 vcc, -1")
            for v in range(1, self.ntailpages):
                A(f"s_cmp_eq_u32 s{S_WAVE}, {v}")
                A(f"s_cbranch_scc1 L_tp{v}")
            A("s_branch L_tp0")
        self.label("L_back")
        A("s_mov_b64 vcc, 0")
        self.stamp(2)
        mt = o.get("mtouch", 0)
        if mt:
            A(f"s_lshr_b32 s{S_T3}, {mt}, s{S_WAVE}")
            A(f"s_and_b32 s{S_T3}, s{S_T3}, 1")
            A("s_cbranch_scc0 L_nomt")
            A(f"buffer_load_dword v{V_TDST}, v{V_TOUCH}, s[{SRD_T}:{SRD_T+3}], s{S_TOFF} offen{self.ldT}")
            self.label("L_nomt")
        self.C("rest of stage 0")
        for n in range(nfirst, 15):
            dma0(n)
        self.C("w stage 1 DMA")
        A(f"s_mov_b32 s{S_WSOFF}, {WSTEP}")
        for i in range(7):
            if i % 4 == 0:
                A(f"s_add_u32 m0, s{S_WDST}, {WBASE + WBUF + i*1024}")
                A("s_nop 0")
            if i == 6:
                A(f"s_cmp_eq_u32 s{S_WAVE}, 3")
                A("s_cbranch_scc1 L_skw1")
            A(f"buffer_load_dwordx4 v{V_WOFF+i}, s[{SRD_W}:{SRD_W+3}], s{S_WSOFF} offen offset:{(i%4)*1024}{self.ldW} lds")
        self.label("L_skw1")
        self.C("BN parameter loads: channel = min(cg*144 + tid, 575)")
        A(f"global_load_ushort v{V_RAW}, v{E}, s[{S_MEAN}:{S_MEAN+1}]")
        A(f"global_load_ushort v{V_RAW+1}, v{E}, s[{S_VAR}:{S_VAR+1}]")
        A(f"global_load_ushort v{V_RAW+2}, v{E}, s[{S_G}:{S_G+1}]")
        A(f"global_load_ushort v{V_RAW+3}, v{E}, s[{S_B}:{S_B+1}]")
        lt = o.get("ltouch", 0)
        self.after_w1 = [4 + ((lt >> v) & 1) for v in range(4)]
        if lt:
            A(f"s_lshr_b32 s{S_T3}, {lt}, s{S_WAVE}")
            A(f"s_and_b32 s{S_T3}, s{S_T3}, 1")
            A("s_cbranch_scc0 L_nolt")
            A(f"buffer_load_dword v{V_TDST}, v{V_TOUCH}, s[{SRD_T}:{SRD_T+3}], s{S_TOFF} offen{self.ldT}")
            self.label("L_nolt")
        self.C("touch() pre-increments: waves 2,3 -> index 2 (peeled step), waves 0,1 -> index 3 (step 1)")
        A(f"s_sub_u32 s{S_T3}, 2, s{S_PH}")
        A(f"s_mul_i32 s{S_TOFF}, s{S_TSTEP}, s{S_T3}")
        self.C("state for the main loop")
        A(f"s_mov_b32 s{S_XSOFF}, 128")
        A(f"s_mov_b32 s{S_XM0}, {XBUF}")
        A(f"s_mov_b32 s{S_WSOFF}, {2*WSTEP}")
        A(f"s_mov_b32 s{S_WDST}, {WBASE+2*WBUF}")
        A(f"s_mov_b32 s{S_WCUR}, {WBASE}")
        A(f"s_mov_b32 s{S_CNT}, 0")
        A(f"s_mov_b32 s{S_L}, {LOG2E:#x}")
        A(f"s_mov_b32 s{S_L+1}, {LOG2E:#x}")
        if o.get("stamps"):
            A(f"s_mul_i32 s{S_T0}, s{S_WAVE}, 96")
            A(f"s_add_u32 s{S_T0}, s{S_T0}, {STMP}")
            A(f"v_mov_b32 v{V_STMP1}, s{S_T0}")
        self.C("dispatch on wave id")
        for v in range(1, 4):
            A(f"s_cmp_eq_u32 s{S_WAVE}, {v}")
            A(f"s_cbranch_scc1 L_w{v}")
        A("s_branch L_w0")
        self.label("L_end0")
        A("s_endpgm")

    def tail_addr(self):
        A = self.A
        E = V_E
        self.C("tail addresses")
        A(f"v_mov_b32 v{V_WT01}, v{V_WRD}")
        A(f"v_add_u32 v{V_WT2}, {2*WBUF}, v{V_WRD}")
        A(f"v_mov_b32 v{V_WO01}, v{V_WRD2}")
        A(f"v_add_u32 v{V_WO2}, {2*WBUF}, v{V_WRD2}")
        A(f"s_lshl_b32 s{S_T2}, s{S_PH}, 13")
        A(f"v_mov_b32 v{E}, {ZERO}")
        A(f"v_mov_b32 v{E+2}, 0")
        A(f"v_mov_b32 v{E+3}, 0")
        A(f"ds_write_b64 v{E}, v[{E+2}:{E+3}]")
        A(f"ds_write_b64 v{E}, v[{E+2}:{E+3}] offset:8")
        A(f"s_cmp_eq_u32 s{S_PH}, 1")
        A(f"s_cselect_b64 s[{S_PC}:{S_PC+1}], -1, 0")
        for h in range(2):
            A(f"v_add_u32 v{V_XT+h}, s{S_T2}, v{V_XRD0+h}")
            A(f"v_add_u32 v{E+1}, {7*1024}, v{V_XRD0+h}")
            A(f"v_cndmask_b32 v{V_XT0+h}, v{E}, v{E+1}, s[{S_PC}:{S_PC+1}]")
            A(f"v_add_u32 v{E+1}, {8*1024}, v{V_XRD0+h}")
            A(f"v_cndmask_b32 v{V_XT9+h}, v{E+1}, v{E}, s[{S_PC}:{S_PC+1}]")
        A(f"v_lshrrev_b32 v{E}, 4, v0")
        A(f"v_lshlrev_b32 v{E}, 4, v{E}")
        A(f"s_lshl_b32 s{S_T2}, s{S_T1}, 1")
        A(f"s_add_u32 s{S_T2}, s{S_T2}, {PARAM}")
        A(f"v_add_u32 v{V_PRF}, s{S_T2}, v{E}")
        A(f"v_add_u32 v{V_PRO}, {PARAM + 512}, v{E}")
        A(f"s_lshl_b32 s{S_T2}, s{S_WAVE}, 13")
        A(f"s_add_u32 s{S_T2}, s{S_T2}, {XBUF}")
        A(f"v_and_b32 v{E}, 15, v0")
        A(f"v_bfe_u32 v{E+1}, v0, 4, 1")
        A(f"v_lshrrev_b32 v{E+2}, 5, v0")
        A(f"v_bfe_u32 v{E+3}, v0, 1, 2")
        A(f"v_xor_b32 v{E+3}, v{E+3}, v{E+2}")
        A(f"v_lshlrev_b32 v{E+4}, 6, v{E}")
        A(f"v_lshl_add_u32 v{E+4}, v{E+3}, 4, v{E+4}")
        A(f"v_lshl_add_u32 v{E+4}, v{E+1}, 3, v{E+4}")
        A(f"v_add_u32 v{V_SW}, s{S_T2}, v{E+4}")
        A(f"v_xor_b32 v{V_SW+1}, 32, v{V_SW}")
        A(f"v_bfe_u32 v{E+3}, v0, 3, 2")
        A(f"v_xor_b32 v{E+3}, v{E+3}, v0")
        A(f"v_lshlrev_b32 v{E+3}, 4, v{E+3}")
        A(f"v_add_u32 v{V_SR}, s{S_T2}, v{E+3}")
        A(f"s_lshl_b32 s{S_T2}, s{S_WAVE}, 11")
        A(f"s_add_u32 s{S_T2}, s{S_T2}, {OSTG}")
        A(f"v_lshlrev_b32 v{E+4}, 5, v{E}")
        A(f"v_lshl_add_u32 v{E+4}, v{E+2}, 4, v{E+4}")
        A(f"v_lshl_add_u32 v{E+4}, v{E+1}, 3, v{E+4}")
        A(f"v_add_u32 v{V_SWO}, s{S_T2}, v{E+4}")
        A(f"v_lshlrev_b32 v{E+4}, 4, v0")
        A(f"v_add_u32 v{V_SRO}, s{S_T2}, v{E+4}")
        A(f"s_mul_i32 s{S_T2}, s{S_PH}, {8*1152}")
        A(f"s_lshl_b32 s{S_T3}, s{S_CG}, 8")
        A(f"s_add_u32 s{S_T2}, s{S_T2}, s{S_T3}")
        A(f"s_add_u32 s{S_T3}, s{S_T2}, s{S_T1}")
        A(f"v_lshrrev_b32 v{E}, 2, v0")
        A(f"v_mul_u32_u24 v{E}, 18432, v{E}")
        A(f"v_and_b32 v{E+1}, 3, v0")
        A(f"v_lshl_add_u32 v{E}, v{E+1}, 4, v{E}")
        A(f"v_add_u32 v{V_ST}, s{S_T3}, v{E}")
        A(f"v_add_u32 v{V_ST+1}, {4*1152}, v{V_ST}")
        A(f"s_mul_i32 s{S_T3}, s{S_CH}, {4*1152}")
        A(f"s_add_u32 s{S_T3}, s{S_T3}, s{S_T2}")
        A(f"s_add_u32 s{S_T3}, s{S_T3}, s{S_ODD}")
        A(f"s_add_u32 s{S_T3}, s{S_T3}, 256")
        A(f"v_bfe_u32 v{E}, v0, 1, 4")
        A(f"v_mul_u32_u24 v{E}, 18432, v{E}")
        A(f"v_mul_u32_u24 v{E+1}, 1152, v{E+2}")
        A(f"v_add3_u32 v{E}, v{E}, v{E+1}, s{S_T3}")
        A(f"v_and_b32 v{E+1}, 1, v0")
        A(f"v_lshl_add_u32 v{V_STO}, v{E+1}, 4, v{E}")

    def params_ops(self):
        P, T = V_RAW, V_E
        L = []
        for i in range(4):
            L.append(f"v_lshlrev_b32 v{P+i}, 16, v{P+i}")
        L += [f"v_add_f32 v{T}, 0x3727c5ac, v{P+1}",
              f"v_cvt_pk_bf16_f32 v{T}, v{T}, v{T}",
              f"v_lshlrev_b32 v{T}, 16, v{T}",
              f"v_sqrt_f32 v{T}, v{T}",
              "s_nop 0",
              f"v_cvt_pk_bf16_f32 v{T}, v{T}, v{T}",
              f"v_lshlrev_b32 v{T}, 16, v{T}",
              f"v_rcp_f32 v{T}, v{T}",
              "s_nop 0",
              f"v_cvt_pk_bf16_f32 v{T}, v{T}, v{T}",
              f"v_lshlrev_b32 v{T}, 16, v{T}",
              f"v_mul_f32 v{T}, v{P+2}, v{T}",
              f"v_cvt_pk_bf16_f32 v{T}, v{T}, v{T}",
              f"v_lshlrev_b32 v{T}, 16, v{T}",
              f"v_fma_f32 v{T+1}, -v{P}, v{T}, v{P+3}",
              f"v_mul_f32 v{T}, s{S_L}, v{T}",
              f"v_mul_f32 v{T+1}, s{S_L}, v{T+1}",
              f"ds_write_b32 v{V_PWR}, v{T}",
              f"ds_write_b32 v{V_PWR}, v{T+1} offset:1024"]
        return L

    def wave_main(self, wv):
        A = self.A
        o = self.o
        nw = 7 if wv < 3 else 6
        self.raw(".p2align 12")
        self.label(f"L_w{wv}")
        A("s_cbranch_vccnz L_backA")
        A(f"s_waitcnt vmcnt({nw + self.after_w1[wv]})")
        A("s_barrier")
        self.stamp(3)
        for i in self.w_reads(0) + self.x_reads(wv, 0):
            A(i)
        first = self.x_dma(wv, 0) + self.x_dma(wv, 1) + self.w_dma(wv)
        fg = o.get("fgap", 4)
        first_late = [(wv + idx * fg, g) for idx, g in enumerate(first)]
        ev, od = self.setups()
        self.step(wv, 0, ev, 0, 3, late_override=first_late, vm_override=self.after_w1[wv] + 8 + nw)
        A(f"s_branch L_mid{wv}")
        self.label(f"L_loop{wv}")
        self.step(wv, 0, ev, 0, 3)
        self.label(f"L_mid{wv}")
        self.step(wv, 0, ev, 3, 5)
        A(f"s_cbranch_scc1 L_tail")
        self.step(wv, 1, od)
        A(f"s_branch L_loop{wv}")

    def setups(self):
        ev = [[f"s_mov_b32 s{S_WDST}, s{S_WCUR}", f"s_add_u32 s{S_WCUR}, s{S_WCUR}, {WBUF}"],
              [f"s_cmp_eq_u32 s{S_WCUR}, {WEND}", f"s_cselect_b32 s{S_WCUR}, {WBASE}, s{S_WCUR}"],
              [f"v_add_u32 v{V_WRD}, s{S_WCUR}, v{V_WLANE}", f"s_add_u32 s{S_WSOFF}, s{S_WSOFF}, {WSTEP}"],
              [f"v_add_u32 v{V_WRD2}, s{S_WCUR}, v{V_WLANE2}"],
              [f"s_add_u32 s{S_XSOFF}, s{S_XSOFF}, 128", f"v_xor_b32 v{V_XRD0}, {XBUF}, v{V_XRD0}"],
              [f"v_xor_b32 v{V_XRD1}, {XBUF}, v{V_XRD1}", f"s_xor_b32 s{S_XM0}, s{S_XM0}, {XBUF}"]]
        return ev, ev[:4]

    def step(self, wv, odd, setup, lo=0, hi=5, late_override=None, vm_override=None):
        A = self.A
        o = self.o
        nw = 7 if wv < 3 else 6
        win = nw + 4
        groups = self.mfma_groups(wv, odd)
        n = [len(g) for g in groups]
        start = [sum(n[:i]) for i in range(6)]
        total = sum(n)
        fill = [[] for _ in range(total)]
        pre = [[] for _ in range(total)]

        def spread(items, lo_, hi_):
            m = len(items)
            for idx, it in enumerate(items):
                fill[lo_ + (idx * (hi_ - lo_)) // m].append(it)

        xr1 = self.x_reads(wv, 1) if not odd else []
        spread(self.w_reads(1) + xr1[0:3], start[0], start[0] + 16)
        spread(self.w_reads(2) + xr1[3:6], start[1], start[1] + 16)
        spread(self.w_reads(3) + self.w_reads(4) + xr1[6:9], start[2], start[2] + 16)
        for gi in range(3):
            pre[start[gi]].append("s_waitcnt lgkmcnt(0)")
        peeled = late_override is not None
        tch = 1 if (o.get("touch", 1) and wv < 2) else 0
        if peeled:
            vm = vm_override
            if o.get("touch", 1) and wv >= 2 and o.get("p2touch", 1):
                fill[o.get("p2pos", 61)].extend(self.touch())
                vm += 1
        elif odd:
            vm = nw + tch
            if tch:
                fill[o.get("tpos", 8) + wv * o.get("tsep", 0)].extend(self.touch())
        else:
            vm = nw + 8 + tch
        if o.get("stamps"):
            pre[start[0]].append(f"s_memtime s[{S_ST}:{S_ST+1}]")
            fill[start[1]].extend([f"v_mov_b32 v{V_STMP0}, s{S_ST}", f"ds_write_b32 v{V_STMP1}, v{V_STMP0}", f"v_add_u32 v{V_STMP1}, 4, v{V_STMP1}"])
        for idx, g in enumerate(setup):
            fill[start[2] + 16 + idx].extend(g)
        fill[start[3] - 1].append(f"s_waitcnt vmcnt({vm}) lgkmcnt(0)")
        pre[start[3]].append("s_barrier")
        spread(self.w_reads(0) + (self.x_reads(wv, 0) if odd else []), start[3], start[3] + 22)
        wg = o.get("wgap", 4)
        for idx, g in enumerate(self.w_dma(wv)):
            pos = start[3] + 1 + (wv * wg) // 4 + idx * wg
            assert pos < total - 2
            fill[pos].extend(g)
        if late_override is None:
            xg = o.get("xgap", 6)
            late = [] if odd else [(o.get("xpos", 2) + (wv * xg) // 4 + idx * xg, g) for idx, g in enumerate(self.x_dma(wv, 0) + self.x_dma(wv, 1))]
        else:
            late = late_override
        for pos, g in late:
            assert pos < start[2] + 16, pos
            fill[pos].extend(g)
        if not odd:
            fill[total - 2].extend([f"s_add_u32 s{S_CNT}, s{S_CNT}, 1", f"s_cmp_eq_u32 s{S_CNT}, 8"])
        flat = [m for g in groups for m in g]
        if peeled:
            seen = set()
            for i, m in enumerate(flat):
                c = m.split()[1]
                if c not in seen:
                    seen.add(c)
                    flat[i] = m[:m.rindex(",")] + ", 0"
        for i in range(start[lo], start[hi]):
            for x in pre[i]: A(x)
            A(flat[i])
            for x in fill[i]: A(x)

    def tail(self):
        o = self.o
        out = []
        st = {"nds": 0}

        def E_(s):
            out.append(s)
            if s.startswith("ds_"):
                st["nds"] += 1
                return st["nds"]
            return None

        def wait_ds(seq):
            n = st["nds"] - seq
            if st.get("waited", 0) >= seq:
                return
            st["waited"] = seq
            out.append(f"s_waitcnt lgkmcnt({min(n, 15)})")

        XS = {15: 1, 16: 0, 17: 2}

        def wread(stage, jj, k, dst):
            slot = stage - 15
            r = []
            for e in range(2):
                off = k * 9216 + e * 2304 + (jj * 32 if jj < 4 else 0)
                if slot < 2:
                    va = V_WT01 if jj < 4 else V_WO01
                    off += slot * WBUF
                else:
                    va = V_WT2 if jj < 4 else V_WO2
                r.append(f"ds_read_b64_tr_b16 a[{dst+2*e}:{dst+2*e+1}], v{va} offset:{off}")
            return r

        def xreads(stage):
            h = stage - 16
            r = []
            for q in range(10):
                b = XF(XS[stage], q)
                if q == 0:
                    r.append(f"ds_read_b128 a[{b}:{b+3}], v{V_XT0+h}")
                elif q == 9:
                    r.append(f"ds_read_b128 a[{b}:{b+3}], v{V_XT9+h}")
                else:
                    r.append(f"ds_read_b128 a[{b}:{b+3}], v{V_XT+h} offset:{(q-1)*1024}")
            return r

        npre = o.get("npre", 3)
        phases = []
        for jj in range(npre):
            phases.append((jj, [15], {(15, k): WFb(jj, k) for k in range(3)}, False))
        bufs = [TA, TB]
        for jj in range(5):
            stages = [16, 17] if jj < npre else [15, 16, 17]
            base = bufs[jj % 2]
            regs = {}
            for i, (sg, k) in enumerate([(sg, k) for sg in stages for k in range(3)]):
                regs[(sg, k)] = base + 4 * i
            phases.append((jj, stages, regs, True))

        def phase_mfmas(ph_, ch):
            jj, stages, regs, final = ph_
            res = []
            sl = range(8) if jj < 4 else range(4)
            for s in sl:
                seq = [(sg, k) for sg in stages for k in range(3)]
                if s % 2: seq = seq[::-1]
                for i, (sg, k) in enumerate(seq):
                    q = s + k + (4 * ch if jj == 4 else 0)
                    res.append((mfma(ACC(jj, s), regs[(sg, k)], XF(XS[sg], q)), (jj, s) if (final and i == len(seq) - 1) else None))
            return res

        def tile_plain(jj, s, tmp, dst):
            acc = ACC(jj, s)
            par = V_PAR + 8 * jj
            y, e = tmp, tmp + 4
            ops = []
            for i in range(4): ops.append((1, f"v_fma_f32 v{y+i}, v{acc+i}, v{par+i}, v{par+4+i}"))
            for i in range(4): ops.append((2, f"v_exp_f32 v{e+i}, -v{y+i}"))
            for i in range(4): ops.append((1, f"v_fma_f32 v{e+i}, v{e+i}, s{S_L}, s{S_L}"))
            for i in range(4): ops.append((2, f"v_rcp_f32 v{e+i}, v{e+i}"))
            for i in range(4): ops.append((1, f"v_mul_f32 v{y+i}, v{y+i}, v{e+i}"))
            ops.append((1, f"v_cvt_pk_bf16_f32 v{dst}, v{y}, v{y+1}"))
            ops.append((1, f"v_cvt_pk_bf16_f32 v{dst+1}, v{y+2}, v{y+3}"))
            return ops

        def tile_pk(jj, s, tmp, dst):
            acc = ACC(jj, s)
            par = V_PAR + 8 * jj
            y, e = tmp, tmp + 4
            ins = [f"v_pk_fma_f32 v[{y}:{y+1}], v[{acc}:{acc+1}], v[{par}:{par+1}], v[{par+4}:{par+5}]",
                   f"v_pk_fma_f32 v[{y+2}:{y+3}], v[{acc+2}:{acc+3}], v[{par+2}:{par+3}], v[{par+6}:{par+7}]"]
            ins += [f"v_exp_f32 v{e+i}, -v{y+i}" for i in range(4)]
            ins += [f"v_pk_fma_f32 v[{e}:{e+1}], v[{e}:{e+1}], s[{S_L}:{S_L+1}], s[{S_L}:{S_L+1}]",
                    f"v_pk_fma_f32 v[{e+2}:{e+3}], v[{e+2}:{e+3}], s[{S_L}:{S_L+1}], s[{S_L}:{S_L+1}]"]
            ins += [f"v_rcp_f32 v{e+i}, v{e+i}" for i in range(4)]
            ins += [f"v_pk_mul_f32 v[{y}:{y+1}], v[{y}:{y+1}], v[{e}:{e+1}]",
                    f"v_pk_mul_f32 v[{y+2}:{y+3}], v[{y+2}:{y+3}], v[{e+2}:{e+3}]",
                    f"v_cvt_pk_bf16_f32 v{dst}, v{y}, v{y+1}",
                    f"v_cvt_pk_bf16_f32 v{dst+1}, v{y+2}, v{y+3}"]
            return ins

        def stage_write(jj, s, dst):
            if jj < 4:
                return f"ds_write_b64 v{V_SW + (jj & 1)}, v[{dst}:{dst+1}] offset:{s*1024}"
            return f"ds_write_b64 v{V_SWO}, v[{dst}:{dst+1}] offset:{s*512}"

        done = set()
        pending = []

        def after_write(jj, s):
            done.add((jj, s))
            if jj < 4:
                if (jj ^ 1, s) in done:
                    r = ACC(jj, s)
                    seq = E_(f"ds_read_b128 v[{r}:{r+3}], v{V_SR} offset:{s*1024}")
                    fl = self.stA if jj < 2 else self.stB
                    pending.append([seq, f"buffer_store_dwordx4 v[{r}:{r+3}], v{V_ST + (s >> 2)}, s[{SRD_O}:{SRD_O+3}], 0 offen offset:{(s&3)*1152 + (jj>>1)*64}{fl}", 0])
            elif (4, s ^ 1) in done:
                r = ACC(4, s)
                seq = E_(f"ds_read_b128 v[{r}:{r+3}], v{V_SRO} offset:{(s>>1)*1024}")
                pending.append([seq, f"buffer_store_dwordx4 v[{r}:{r+3}], v{V_STO}, s[{SRD_O}:{SRD_O+3}], 0 offen offset:{(s>>1)*2*1152}{self.stO}", 0])

        def flush_pending(min_age):
            while pending and pending[0][2] >= min_age:
                seq, ins, _ = pending.pop(0)
                wait_ds(seq)
                E_(ins)

        vs = {"queue": [], "cur": None, "ops": [], "n": 0}
        ready = {}
        params_seq = [None]

        def valu_fill(cap):
            while cap > 0:
                if vs["cur"] is None:
                    if not vs["queue"]:
                        return
                    t = vs["queue"][0]
                    if len(out) - ready[t] < 9:
                        return
                    vs["queue"].pop(0)
                    vs["cur"] = t
                    k = vs["n"] % 2
                    vs["n"] += 1
                    vs["dst"] = V_E + 16 + 2 * k
                    vs["ops"] = tile_plain(t[0], t[1], V_E + 8 * k, vs["dst"])
                    wait_ds(params_seq[0])
                w, ins = vs["ops"][0]
                if w > cap:
                    return
                vs["ops"].pop(0)
                E_(ins)
                cap -= w
                if not vs["ops"]:
                    t = vs["cur"]
                    E_(stage_write(t[0], t[1], vs["dst"]))
                    after_write(*t)
                    vs["cur"] = None

        def run_phase(idx, ch, aux, need_seq):
            ms = phase_mfmas(phases[idx], ch)
            n = len(ms)
            span = max(1, n - 8)
            place = [[] for _ in range(n)]
            for i, a in enumerate(aux):
                place[(i * span) // len(aux)].append(a)
            last = None
            if need_seq is not None:
                wait_ds(need_seq)
            for i, (m, fin) in enumerate(ms):
                E_(m)
                if fin is not None:
                    ready[fin] = len(out)
                    vs["queue"].append(fin)
                cap = 2
                for a in place[i]:
                    sq = E_(a)
                    if sq is not None: last = sq
                    if a.startswith("v_"): cap -= 2 if ("sqrt" in a or "rcp" in a) else 1
                for p in pending: p[2] += 1
                flush_pending(6)
                valu_fill(cap)
            return last

        def wset(idx):
            jj, stages, regs, _ = phases[idx]
            r = []
            for (sg, k), reg in regs.items():
                r += wread(sg, jj, k, reg)
            return r

        nph = len(phases)
        assert npre >= 2
        pr = []
        for jj in range(4):
            pr.append(f"ds_read_b128 v[{V_PAR+8*jj}:{V_PAR+8*jj+3}], v{V_PRF} offset:{64*jj}")
            pr.append(f"ds_read_b128 v[{V_PAR+8*jj+4}:{V_PAR+8*jj+7}], v{V_PRF} offset:{64*jj+1024}")
        pr.append(f"ds_read_b128 v[{V_PAR+32}:{V_PAR+35}], v{V_PRO}")
        pr.append(f"ds_read_b128 v[{V_PAR+36}:{V_PAR+39}], v{V_PRO} offset:1024")
        out.append("s_waitcnt vmcnt(6) lgkmcnt(0)")
        out.append("s_barrier")
        xr = xreads(16) + xreads(17)
        nxp = npre - 1 if npre > 2 else 2
        need = None
        for idx in range(nph - 1):
            aux = wset(idx + 1)
            if idx < nxp:
                aux += xr[idx * 20 // nxp:(idx + 1) * 20 // nxp]
            if idx == npre - 1:
                out.append("s_waitcnt vmcnt(0) lgkmcnt(0)")
                out.append("s_barrier")
                st["waited"] = st["nds"]
                aux += pr
            if idx == 0:
                po = self.params_ops()
                rest = aux
                aux = []
                while po or rest:
                    if rest: aux.append(rest.pop(0))
                    for _ in range(2):
                        if po: aux.append(po.pop(0))
            need = run_phase(idx, 0, aux, need)
            if idx == npre - 1:
                params_seq[0] = need
        saved = (list(vs["queue"]), vs["cur"], list(vs["ops"]), vs["n"], vs.get("dst"), set(done), [list(p) for p in pending], dict(ready), dict(st))
        out.append(f"s_cmp_eq_u32 s{S_CH}, 1")
        out.append("s_cbranch_scc1 L_odd1")
        mark = len(out)
        run_phase(nph - 1, 0, [], need)
        out.append("s_branch L_oddj")
        len0 = len(out) - mark
        out.append("L_odd1:")
        shift = len(out) - mark
        vs["queue"], vs["cur"], vs["ops"], vs["n"], vs["dst"] = list(saved[0]), saved[1], list(saved[2]), saved[3], saved[4]
        done.clear(); done.update(saved[5])
        pending[:] = [list(p) for p in saved[6]]
        ready.clear(); ready.update({k: v + shift for k, v in saved[7].items()})
        st.clear(); st.update(saved[8])
        run_phase(nph - 1, 1, [], need)
        out.append("L_oddj:")
        if o.get("stamps"):
            out.append(f"s_memtime s[{S_TS+10}:{S_TS+11}]")
        if vs["cur"] is not None:
            ops = vs["ops"]
            for i, (w, ins) in enumerate(ops):
                E_(ins)
            t = vs["cur"]
            E_(stage_write(t[0], t[1], vs["dst"]))
            after_write(*t)
            vs["cur"] = None
        rem = list(vs["queue"])
        self.nhidden = 36 - len(rem)
        order = []
        remset = set(rem)
        for t in rem:
            if t not in remset: continue
            remset.discard(t)
            partner = (t[0] ^ 1, t[1]) if t[0] < 4 else (4, t[1] ^ 1)
            order.append(t)
            if partner in remset:
                remset.discard(partner)
                order.append(partner)
        out.append("s_nop 7")
        k = 0
        i = 0
        while i < len(order):
            grp = order[i:i + 2]
            i += 2
            d = V_E + 16
            lists = [tile_pk(t[0], t[1], V_E + 8 * n_, d + 2 * n_) for n_, t in enumerate(grp)]
            if len(lists) == 1:
                a = lists[0]
                for j, x in enumerate(a):
                    E_(x)
                    if j in (5, 11): E_("s_nop 0")
            else:
                for j, (x, y) in enumerate(zip(*lists)):
                    E_(x); E_(y)
                    if j == 7:
                        for p in pending: p[2] += 100
                        flush_pending(6)
            for n_, t in enumerate(grp):
                E_(stage_write(t[0], t[1], d + 2 * n_))
                after_write(*t)
        for p in pending: p[2] += 100
        flush_pending(0)
        return out

    def emit_tail(self, out):
        A = self.A
        self.raw(".p2align 12")
        page = 0
        self.label("L_tail")
        self.label("L_tp0")
        A("s_cbranch_vccnz L_back")
        self.stamp(4)
        size = 4 + (16 if self.o.get("stamps") else 0)
        for ins in out:
            if ins.endswith(":"):
                self.label(ins[:-1]); continue
            if size >= 4096 * (page + 1):
                page += 1
                self.label(f"L_tp{page}")
                A("s_cbranch_vccnz L_back")
                size += 4
            A(ins)
            size += ins_size(ins)
        return page + 1

    def finish(self):
        A = self.A
        o = self.o
        self.stamp(6)
        if o.get("stamps"):
            A("s_waitcnt vmcnt(0)")
            self.stamp(7)
            A(f"s_memrealtime s[{S_TS+28}:{S_TS+29}]")
            A("s_waitcnt lgkmcnt(0)")
            A(f"s_lshl_b32 s{S_T0}, s2, 2")
            A(f"s_add_u32 s{S_T0}, s{S_T0}, s{S_WAVE}")
            A(f"s_lshl_b32 s{S_T0}, s{S_T0}, 8")
            A(f"v_mov_b32 v1, s{S_T0}")
            A(f"s_mul_i32 s{S_T1}, s{S_WAVE}, 96")
            A(f"s_add_u32 s{S_T1}, s{S_T1}, {STMP}")
            A(f"v_and_b32 v3, 31, v0")
            A(f"v_lshlrev_b32 v3, 2, v3")
            A(f"v_add_u32 v4, s{S_T1}, v3")
            A(f"ds_read_b32 v4, v4")
            A(f"v_add_u32 v3, v3, v1")
            A("s_waitcnt lgkmcnt(0)")
            A(f"global_store_dword v3, v4, s[{S_WS}:{S_WS+1}] offset:128")
            for i in range(8):
                A(f"v_mov_b32 v2, s{S_TS+2*i}")
                A(f"global_store_dword v1, v2, s[{S_WS}:{S_WS+1}] offset:{4*i}")
            for j, r in enumerate((30, 28, 26, 24)):
                A(f"v_mov_b32 v2, s{S_TS+r}")
                A(f"global_store_dword v1, v2, s[{S_WS}:{S_WS+1}] offset:{32+4*j}")
        A("s_endpgm")
        self.label("L_code_end")

    def emit(self):
        tail = self.tail()
        save = self.L
        self.L = []
        self.ntailpages = self.emit_tail(tail)
        self.L = save
        assert self.ntailpages <= 4, self.ntailpages
        out = [HEADER.rstrip("\n")]
        out.append(f"; @launch grid=(256,1,1) block=(256,1,1) lds={LDS_BYTES + (512 if self.o.get('stamps') else 0)}")
        out.append('.amdgcn_target "amdgcn-amd-amdhsa--gfx950"')
        out.append(".text")
        out.append(f".globl {NAME}")
        out.append(".p2align 12")
        out.append(".p2align 8")
        out.append(f".type {NAME},@function")
        out.append(f"{NAME}:")
        self.prologue()
        for wv in range(4):
            self.wave_main(wv)
        self.emit_tail(tail)
        self.finish()
        out += self.L
        out.append('.section .rodata,"a"')
        out.append(".p2align 6")
        out.append(f".amdhsa_kernel {NAME}")
        out.append("  .amdhsa_next_free_vgpr 512")
        out.append("  .amdhsa_next_free_sgpr 96")
        out.append("  .amdhsa_accum_offset 256")
        out.append("  .amdhsa_group_segment_fixed_size 0")
        out.append("  .amdhsa_kernarg_size 72")
        out.append("  .amdhsa_user_sgpr_count 2")
        out.append("  .amdhsa_user_sgpr_kernarg_segment_ptr 1")
        out.append("  .amdhsa_system_sgpr_workgroup_id_x 1")
        out.append("  .amdhsa_float_denorm_mode_32 3")
        out.append(".end_amdhsa_kernel")
        return "\n".join(out) + "\n"


def ins_size(ins):
    op = ins.split()[0]
    if op.startswith(("v_mfma", "ds_", "buffer_", "global_", "v_pk_", "v_fma_", "v_cvt_pk", "s_memtime", "s_memrealtime")):
        return 8
    if op == "v_exp_f32":
        return 8 if "-v" in ins else 4
    if op in ("v_add_f32",) and "0x" in ins:
        return 8
    if op.startswith(("s_waitcnt", "s_barrier", "s_nop", "s_cbranch", "s_branch", "s_cmp", "v_rcp", "v_sqrt", "v_mul_f32", "v_lshlrev_b32")):
        return 4
    raise ValueError(ins)


if __name__ == "__main__":
    opts = {}
    path = sys.argv[1]
    for a in sys.argv[2:]:
        k, _, v = a.partition("=")
        opts[k] = int(v) if v else 1
    g = Gen(opts)
    open(path, "w").write(g.emit())
    print(path, "tail pages", g.ntailpages, "hidden tiles", g.nhidden)
```

```python
import sys, re
def wrap(src, mode, ia, ib, N):
    m = re.search(r"; @launch grid=\(256,1,1\) block=\(256,1,1\) lds=(\d+)", src)
    lds = m.group(1)
    src = src.replace(m.group(0), f"; @launch kernel=standalone__batchnorm__sampling_kernel grid=(256,1,1) block=(256,1,1) lds={lds}\n; @launch kernel=probe_kernel grid=(1,1,1) block=(64,1,1) lds=0")
    L = []
    A = lambda s: L.append("    " + s)
    L.append(".text"); L.append(".globl probe_kernel"); L.append(".p2align 8"); L.append(".type probe_kernel,@function"); L.append("probe_kernel:")
    A("s_cmp_ge_u32 s2, 1"); A("s_cbranch_scc1 P_end")
    A("s_memrealtime s[16:17]")
    A("s_load_dwordx2 s[4:5], s[0:1], 64")
    A("v_lshlrev_b32 v1, 8, v0")
    A("s_waitcnt lgkmcnt(0)")
    for k in range(16):
        A(f"global_load_dword v{8+k}, v1, s[4:5] offset:{4*ia} sc1")
        A(f"global_load_dword v{24+k}, v1, s[4:5] offset:{4*ib} sc1")
        A("v_add_u32 v1, 0x4000, v1")
    A("s_waitcnt vmcnt(0)")
    if mode == "avg":
        A("v_mov_b32 v2, 0")
        for k in range(16):
            A(f"v_sub_u32 v3, v{24+k}, v{8+k}")
            A("v_add_u32 v2, v2, v3")
        A("s_mov_b32 s6, 0")
        A("s_nop 1")
        for l in range(64):
            A(f"v_readlane_b32 s7, v2, {l}")
            A("s_nop 0")
            A("s_add_u32 s6, s6, s7")
        A(f"s_mul_i32 s6, s6, {N}")
        A("s_lshr_b32 s6, s6, 10")
    elif mode == "maxd":
        A("v_mov_b32 v2, 0")
        for k in range(16):
            A(f"v_sub_u32 v3, v{24+k}, v{8+k}")
            A("v_max_u32 v2, v2, v3")
        A("s_mov_b32 s6, 0")
        A("s_nop 1")
        for l in range(64):
            A(f"v_readlane_b32 s7, v2, {l}")
            A("s_nop 0")
            A("s_max_u32 s6, s6, s7")
        A(f"s_mul_i32 s6, s6, {N}")
    else:
        for k in range(1, 16):
            A(f"v_min_u32 v8, v8, v{8+k}")
            A(f"v_max_u32 v24, v24, v{24+k}")
        A("s_mov_b32 s6, 0"); A("s_mov_b32 s8, -1")
        A("s_nop 1")
        for l in range(64):
            A(f"v_readlane_b32 s7, v24, {l}")
            A(f"v_readlane_b32 s9, v8, {l}")
            A("s_nop 0")
            A("s_max_u32 s6, s6, s7")
            A("s_min_u32 s8, s8, s9")
        if mode == "gap":
            A("s_sub_u32 s6, s16, s6")
        elif mode == "tot":
            A("s_sub_u32 s6, s16, s8")
        else:
            A("s_sub_u32 s6, s6, s8")
        A(f"s_mul_i32 s6, s6, {N}")
    A("s_min_u32 s6, s6, 200000")
    A("s_memrealtime s[10:11]")
    A("s_waitcnt lgkmcnt(0)")
    L.append("P_spin:")
    A("s_memrealtime s[12:13]")
    A("s_waitcnt lgkmcnt(0)")
    A("s_sub_u32 s14, s12, s10")
    A("s_cmp_lt_u32 s14, s6")
    A("s_cbranch_scc1 P_spin")
    L.append("P_end:")
    A("s_endpgm")
    kd = """.section .rodata,"a"
.p2align 6
.amdhsa_kernel probe_kernel
  .amdhsa_next_free_vgpr 64
  .amdhsa_next_free_sgpr 32
  .amdhsa_accum_offset 64
  .amdhsa_group_segment_fixed_size 0
  .amdhsa_kernarg_size 72
  .amdhsa_user_sgpr_count 2
  .amdhsa_user_sgpr_kernarg_segment_ptr 1
  .amdhsa_system_sgpr_workgroup_id_x 1
.end_amdhsa_kernel
"""
    i = src.index('.section .rodata,"a"')
    return src[:i] + "\n".join(L) + "\n" + src[i:] + kd
if __name__ == "__main__":
    src = open(sys.argv[1]).read()
    pre = sys.argv[2]
    N = 10
    for name, mode, ia, ib, n in (("0", "span", 8, 9, 0), ("span", "span", 8, 9, N), ("pro", "avg", 8, 10, N), ("loop", "avg", 10, 11, N), ("tail", "avg", 11, 9, N), ("skew", "span", 8, 8, N), ("gap", "gap", 8, 9, N), ("tot", "tot", 8, 9, N),
        ("rpl", "avg", 8, 11, N), ("rplmax", "maxd", 8, 11, N), ("cpro", "avg", 0, 3, 1), ("cpromax", "maxd", 0, 3, 1), ("cloop", "avg", 3, 4, 1), ("cloopmax", "maxd", 3, 4, 1), ("cs4", "avg", 32, 36, 1), ("cs4max", "maxd", 32, 36, 1),
        ("ctail", "avg", 4, 7, 1), ("ctailmax", "maxd", 4, 7, 1), ("cpl", "avg", 0, 4, 1), ("cplmax", "maxd", 0, 4, 1)):
        open(f"{pre}_{name}.s", "w").write(wrap(src, mode, ia, ib, n))
```
